```python
import torch

def _softmax(x, axis=-1):
    return torch.softmax(x, dim=axis)
def _gelu(x):
    return torch.nn.functional.gelu(x, approximate="tanh")
def _silu(x):
    return torch.nn.functional.silu(x)
def _sigmoid(x):
    return torch.sigmoid(x)
def _layernorm(x, axis=-1, eps=1e-5):
    m = x.mean(dim=axis, keepdim=True)
    v = x.var(dim=axis, keepdim=True, unbiased=False)
    return (x - m) / torch.sqrt(v + eps)
def _scatter_add(tgt, idx, src, axis=0):
    return tgt.clone().index_add_(axis, idx, src)
def _segment_sum(src, seg, n):
    out = torch.zeros((n,) + src.shape[1:], dtype=src.dtype)
    return out.index_add_(0, seg, src)
def _pad(x, pw):
    flat = tuple(v for pair in reversed(pw) for v in pair)
    return torch.nn.functional.pad(x, flat)

kernel_name = 'concat_heads__mha_block_cached__gqa_block_cached__near_ridge'

def setup_inputs():

    _w = (lambda a: (lambda t: t.to(torch.bfloat16) if t.is_floating_point() else t)(torch.as_tensor(a)))
    def _A_setup():
        B, Sq, D = 16, 128, 512
        H, Sk, Dh = 32, 512, 128
        return {
            "x": _w((lambda *s: torch.randn(*s, dtype=torch.bfloat16) * 0.8)(B, Sq, D)),
            "k_cache": _w((lambda *s: torch.randn(*s, dtype=torch.bfloat16) * 0.8)(B, H, Sk, Dh)),
            "v_cache": _w((lambda *s: torch.randn(*s, dtype=torch.bfloat16) * 0.05)(B, H, Sk, Dh)),
            "wq": _w((lambda *s: torch.randn(*s, dtype=torch.bfloat16) * 0.8)(D, H * Dh) * (D ** -0.5)),
            "wo": _w((lambda *s: torch.randn(*s, dtype=torch.bfloat16) * 0.05)(H * Dh, D) * ((H * Dh) ** -0.5)),
        }
    _A_in = _A_setup()

    def _B_setup():
        B, Sq, D = 16, 128, 512
        Hq, Hkv, Sk, Dh = 32, 32, 512, 128
        assert Hq % Hkv == 0, (Hq, Hkv)
        return {
            "x": _w((lambda *s: torch.randn(*s, dtype=torch.bfloat16) * 0.8)(B, Sq, D)),
            "k_cache": _w((lambda *s: torch.randn(*s, dtype=torch.bfloat16) * 0.8)(B, Hkv, Sk, Dh)),
            "v_cache": _w((lambda *s: torch.randn(*s, dtype=torch.bfloat16) * 0.05)(B, Hkv, Sk, Dh)),
            "wq": _w((lambda *s: torch.randn(*s, dtype=torch.bfloat16) * 0.8)(D, Hq * Dh) * (D ** -0.5)),
            "wo": _w((lambda *s: torch.randn(*s, dtype=torch.bfloat16) * 0.05)(Hq * Dh, D) * ((Hq * Dh) ** -0.5)),
        }
    _B_in = _B_setup()

    return {
        "A_x": _A_in["x"],
        "A_k_cache": _A_in["k_cache"],
        "A_v_cache": _A_in["v_cache"],
        "A_wq": _A_in["wq"],
        "A_wo": _A_in["wo"],
        "B_x": _B_in["x"],
        "B_k_cache": _B_in["k_cache"],
        "B_v_cache": _B_in["v_cache"],
        "B_wq": _B_in["wq"],
        "B_wo": _B_in["wo"],
    }

def reference(A_x, A_k_cache, A_v_cache, A_wq, A_wo, B_x, B_k_cache, B_v_cache, B_wq, B_wo):
    def _A_ref(x, k_cache, v_cache, wq, wo):
        B, Sq, D = x.shape
        H, Dh = 32, 128
        q = (lambda x, *d: x.permute(*d))((x @ wq).reshape(B, Sq, H, Dh), 0, 2, 1, 3)
        scores = torch.einsum("bhqd,bhkd->bhqk", q, k_cache) * (Dh ** -0.5)
        p = _softmax(scores, axis=-1)
        o = torch.einsum("bhqk,bhkd->bhqd", p, v_cache)
        return (lambda x, *d: x.permute(*d))(o, 0, 2, 1, 3).reshape(B, Sq, H * Dh) @ wo

    def _B_ref(x, k_cache, v_cache, wq, wo):
        B, Sq, D = x.shape
        Hq, Dh = 32, 128
        Hkv = k_cache.shape[1]
        rep = Hq // Hkv
        q = (lambda x, *d: x.permute(*d))((x @ wq).reshape(B, Sq, Hq, Dh), 0, 2, 1, 3)
        k = (lambda x, n, axis: torch.repeat_interleave(x, n, dim=axis))(k_cache, rep, axis=1)
        v = (lambda x, n, axis: torch.repeat_interleave(x, n, dim=axis))(v_cache, rep, axis=1)
        scores = torch.einsum("bhqd,bhkd->bhqk", q, k) * (Dh ** -0.5)
        p = _softmax(scores, axis=-1)
        o = torch.einsum("bhqk,bhkd->bhqd", p, v)
        return (lambda x, *d: x.permute(*d))(o, 0, 2, 1, 3).reshape(B, Sq, Hq * Dh) @ wo

    a = _A_ref(A_x, A_k_cache, A_v_cache, A_wq, A_wo)
    b = _B_ref(B_x, B_k_cache, B_v_cache, B_wq, B_wo)
    return torch.concatenate([a, b], axis=-1)
```

```python
def R(base, n):
    return list(range(base, base + n))


def vr(base, n):
    return f"v[{base}:{base + n - 1}]" if n > 1 else f"v{base}"


class Asm:
    def __init__(self):
        self.out = []
        self.pos = 0
        self.hist = []
        self.vm_seq = 0
        self.vm_done = 0
        self.lg_seq = 0
        self.lg_done = 0
        self.pend = {}
        self.n_inst = 0
        self.n_nop = 0

    def raw(self, text):
        self.out.append(text)

    def comment(self, text):
        self.out.append("    ; " + text)

    def _put(self, text, states=1):
        self.out.append("    " + text)
        self.pos += states
        self.n_inst += 1

    def nop(self, n):
        while n > 0:
            k = min(n, 16)
            self._put(f"s_nop {k - 1}", k)
            self.n_nop += 1
            n -= k

    def wait_vm_seq(self, seq):
        self._wait(seq, None)

    def _wait(self, vm, lg):
        parts = []
        if vm is not None and vm >= self.vm_done:
            n = self.vm_seq - (vm + 1)
            assert 0 <= n <= 63, n
            parts.append(f"vmcnt({n})")
            self.vm_done = vm + 1
        if lg is not None and lg >= self.lg_done:
            n = self.lg_seq - (lg + 1)
            assert 0 <= n <= 15, n
            parts.append(f"lgkmcnt({n})")
            self.lg_done = lg + 1
        if parts:
            self._put("s_waitcnt " + " ".join(parts))
            for r in [r for r, (k, s) in self.pend.items()
                      if (k == 'vm' and s < self.vm_done) or (k == 'lg' and s < self.lg_done)]:
                del self.pend[r]

    def wait_all_lg(self):
        if self.lg_seq > self.lg_done:
            self._wait(None, self.lg_seq - 1)

    def wait_all_vm(self):
        if self.vm_seq > self.vm_done:
            self._wait(self.vm_seq - 1, None)

    def emit(self, text, kind, w=(), r=(), rc=(), passes=0, sw=(), sr=(), m0w=False, m0r=False):
        w, r, rc = set(w), set(r), set(rc)
        vm = lg = None
        for x in (w | r | rc):
            if x in self.pend:
                k, s = self.pend[x]
                if k == 'vm':
                    vm = s if vm is None else max(vm, s)
                else:
                    lg = s if lg is None else max(lg, s)
        self._wait(vm, lg)
        if kind in ('vmem_ld', 'vmem_st', 'dma'):
            if self.vm_seq - self.vm_done >= 63:
                self._wait(self.vm_seq - 63, None)
        if kind in ('ds_rd', 'ds_wr'):
            if self.lg_seq - self.lg_done >= 15:
                self._wait(None, self.lg_seq - 15)
        need = 0
        allr = r | rc
        is_valu = kind in ('valu', 'trans', 'perm', 'rfl')
        for h in self.hist:
            dist = self.pos - h['pos'] - 1
            req = 0
            hk = h['kind']
            h_valu = hk in ('valu', 'trans', 'perm', 'rfl')
            if h_valu:
                if kind == 'mfma' and (h['w'] & allr):
                    req = max(req, 2)
                if kind == 'perm' and (h['w'] & (allr | w)):
                    req = max(req, 2)
                if kind == 'rfl' and (h['w'] & allr):
                    req = max(req, 1)
                if hk == 'trans' and is_valu and kind != 'trans' and (h['w'] & allr):
                    req = max(req, 1)
                if h['sw'] & set(sr):
                    if is_valu:
                        req = max(req, 2)
                    if kind in ('vmem_ld', 'vmem_st', 'dma'):
                        req = max(req, 5)
            if hk == 'mfma':
                p = h['passes']
                big = {2: 5, 4: 8, 8: 12, 16: 20}[p]
                if kind == 'mfma':
                    if h['w'] & r:
                        req = max(req, big)
                    if h['w'] & rc:
                        if h['w'] == rc and p == passes:
                            req = max(req, 2 if p == 2 else 0)
                        else:
                            req = max(req, {2: 4, 4: 6, 8: 10, 16: 18}[p])
                    elif h['w'] & w:
                        req = max(req, {2: 4, 4: 6, 8: 10, 16: 18}[p])
                else:
                    if h['w'] & (allr | w):
                        req = max(req, big)
                    if is_valu and (h['rc'] & w):
                        req = max(req, {2: 1, 4: 3, 8: 7, 16: 15}[p])
            if hk == 'vmem_st' and h['wide'] and (h['r'] & w):
                req = max(req, 2)
            if h['m0w'] and m0r:
                req = max(req, 1)
            need = max(need, req - dist)
        if need > 0:
            self.nop(need)
        rec = dict(pos=self.pos, kind=kind, w=w, r=r, rc=rc, passes=passes, sw=set(sw), m0w=m0w,
                   wide=(kind == 'vmem_st' and len(r) > 2))
        self._put(text)
        self.hist.append(rec)
        if len(self.hist) > 24:
            self.hist.pop(0)
        seq = None
        if kind in ('vmem_ld', 'vmem_st', 'dma'):
            seq = self.vm_seq
            if kind == 'vmem_ld':
                for x in w:
                    self.pend[x] = ('vm', seq)
            self.vm_seq += 1
        if kind in ('ds_rd', 'ds_wr'):
            seq = self.lg_seq
            if kind == 'ds_rd':
                for x in w:
                    self.pend[x] = ('lg', seq)
            self.lg_seq += 1
        return seq

    def salu(self, text, m0w=False):
        self.emit(text, 'salu', m0w=m0w)

    def valu(self, op, d, *srcs, kind='valu', sr=()):
        ops = []
        r = []
        sread = list(sr)
        for s in srcs:
            if isinstance(s, int):
                ops.append(f"v{s}")
                r.append(s)
            else:
                ops.append(s)
                t = s.lstrip('-')
                if t.startswith('v') and t[1:].isdigit():
                    r.append(int(t[1:]))
                if t.startswith('s') and t[1:].isdigit():
                    sread.append(int(t[1:]))
        self.emit(f"{op} v{d}, " + ", ".join(ops), kind, w=[d], r=r, sr=sread)

    def mfma32(self, d, a, b, c=None):
        ctext = "0" if c is None else vr(c, 16)
        self.emit(f"v_mfma_f32_32x32x16_bf16 {vr(d, 16)}, {vr(a, 4)}, {vr(b, 4)}, {ctext}", 'mfma',
                  w=R(d, 16), r=R(a, 4) + R(b, 4), rc=([] if c is None else R(c, 16)), passes=8)

    def ds_read_b128(self, d, addr, off):
        assert 0 <= off < 65536
        return self.emit(f"ds_read_b128 {vr(d, 4)}, v{addr} offset:{off}", 'ds_rd', w=R(d, 4), r=[addr])

    def ds_read_tr(self, d, addr, off):
        assert 0 <= off < 65536
        return self.emit(f"ds_read_b64_tr_b16 {vr(d, 2)}, v{addr} offset:{off}", 'ds_rd', w=R(d, 2), r=[addr])

    def swap32(self, a, b):
        self.emit(f"v_permlane32_swap_b32 v{a}, v{b}", 'perm', w=[a, b], r=[a, b])

    def cvt_pk(self, d, a, b):
        self.emit(f"v_cvt_pk_bf16_f32 v{d}, v{a}, v{b}", 'valu', w=[d], r=[a, b])

    def buf_load4(self, d, voff, srd, soff, off=0, flags=""):
        assert 0 <= off < 4096
        return self.emit(f"buffer_load_dwordx4 {vr(d, 4)}, v{voff}, s[{srd}:{srd + 3}], {soff} offen offset:{off}{flags}",
                         'vmem_ld', w=R(d, 4), r=[voff])

    def buf_store4(self, s, voff, srd, soff, off=0, flags=""):
        assert 0 <= off < 4096
        return self.emit(f"buffer_store_dwordx4 {vr(s, 4)}, v{voff}, s[{srd}:{srd + 3}], {soff} offen offset:{off}{flags}",
                         'vmem_st', r=R(s, 4) + [voff])

    def dma4(self, voff, srd, soff, off=0, flags=""):
        assert 0 <= off < 4096
        return self.emit(f"buffer_load_dwordx4 v{voff}, s[{srd}:{srd + 3}], {soff} offen offset:{off}{flags} lds",
                         'dma', r=[voff], m0r=True)

    def barrier(self):
        self.emit("s_barrier", 'other')

    def text(self):
        return "\n".join(self.out) + "\n"
```

```python
import struct
import sys
import os

sys.path.insert(0, os.path.dirname(os.path.abspath(__file__)))
from asmgen import Asm, R, vr

NAME = "concat_heads__mha_block_cached__gqa_block_cached__near_ridge"


def f32hex(x):
    return "0x%08x" % struct.unpack("<I", struct.pack("<f", x))[0]


SCALE_LOG2E = (128 ** -0.5) * 1.4426950408889634

KV_FLAGS = os.environ.get("KV_FLAGS", "")


class TileMgr:
    def __init__(self, a, nslots, order, issue_fn, slot_bytes=16384):
        self.a = a
        self.nslots = nslots
        self.free = list(range(nslots))
        self.order = order
        self.index = {k: i for i, k in enumerate(order)}
        self.slot = {}
        self.seq = {}
        self.issue_fn = issue_fn
        self.freed = set()
        self.slot_bytes = slot_bytes

    def issue(self, key):
        s = self.free.pop(0)
        self.slot[key] = s
        self.seq[key] = self.issue_fn(key, s)

    def pending(self):
        return [k for k in self.order if k not in self.slot]

    def ready(self, key, mode):
        a = self.a
        t = self.index[key]
        a.wait_vm_seq(self.seq[key])
        a.barrier()
        lim = t if mode == 'late' else t - 1
        for k in self.order[:max(lim, 0)]:
            if k not in self.freed:
                self.freed.add(k)
                self.free.append(self.slot[k])
        for k in self.pending():
            if not self.free:
                break
            self.issue(k)

    def base(self, key):
        return self.slot[key] * self.slot_bytes


def run_pipeline(a, tm, items, fillers, ring_base, NR, D):
    n = len(items)
    nxt = 0
    for i in range(n):
        while nxt < n and nxt <= i + D:
            it = items[nxt]
            if it.get('first'):
                if it['mode'] == 'late' and nxt > i:
                    break
                tm.ready(it['tile'], it['mode'])
            it['reads'](ring_base + 4 * (nxt % NR))
            nxt += 1
        for f in fillers.get(i, []):
            f()
        items[i]['mfma'](ring_base + 4 * (i % NR))


def spread(ops, start, count):
    res = {}
    per = (len(ops) + count - 1) // count
    for j, op in enumerate(ops):
        res.setdefault(start + j // per, []).append(op)
    return res


def merge(dst, src):
    for k, v in src.items():
        dst.setdefault(k, []).extend(v)


def make_srd(a, d, ptr, nbytes):
    a.salu(f"s_mov_b32 s{d}, s{ptr}")
    a.salu(f"s_and_b32 s{d + 1}, s{ptr + 1}, 0xffff")
    a.salu(f"s_mov_b32 s{d + 2}, {nbytes}")
    a.salu(f"s_mov_b32 s{d + 3}, 0x00020000")


def gen_k1():
    a = Asm()
    a.raw(".p2align 8")
    a.raw("attn_kernel:")
    a.salu("s_cmp_ge_u32 s2, 1024")
    a.salu("s_cbranch_scc1 L_attn_end")
    a.salu("s_load_dwordx16 s[16:31], s[0:1], 0")
    a.salu("s_load_dwordx4 s[32:35], s[0:1], 64")
    a.salu("s_load_dwordx2 s[36:37], s[0:1], 96")
    a.salu("s_and_b32 s3, s2, 7")
    a.salu("s_lshr_b32 s4, s2, 3")
    a.salu("s_lshr_b32 s5, s3, 2")
    a.salu("s_and_b32 s6, s3, 3")
    a.salu("s_lshr_b32 s7, s4, 3")
    a.salu("s_and_b32 s8, s4, 7")
    a.salu("s_lshl_b32 s6, s6, 3")
    a.salu("s_add_u32 s8, s8, s6")
    a.emit("v_lshrrev_b32 v1, 6, v0", 'valu', w=[1], r=[0])
    a.emit("v_and_b32 v0, 63, v0", 'valu', w=[0], r=[0])
    a.emit("v_readfirstlane_b32 s60, v1", 'rfl', r=[1], sw=[60])
    a.salu("s_waitcnt lgkmcnt(0)")
    a.salu("s_cmp_eq_u32 s5, 0")
    a.salu("s_cselect_b64 s[10:11], s[16:17], s[26:27]")
    a.salu("s_cselect_b64 s[12:13], s[18:19], s[28:29]")
    a.salu("s_cselect_b64 s[14:15], s[20:21], s[30:31]")
    a.salu("s_cselect_b64 s[38:39], s[22:23], s[32:33]")
    make_srd(a, 40, 10, 2 << 20)
    make_srd(a, 44, 12, 64 << 20)
    make_srd(a, 48, 14, 64 << 20)
    make_srd(a, 52, 38, 4 << 20)
    make_srd(a, 56, 36, 32 << 20)
    XS, KS, VS, WS, OS = 40, 44, 48, 52, 56
    a.salu("s_lshl_b32 s61, s7, 5")
    a.salu("s_add_u32 s61, s61, s8")
    a.salu("s_lshl_b32 s61, s61, 17")
    a.salu("s_lshl_b32 s64, s8, 8")
    a.salu("s_lshl_b32 s65, s60, 12")
    a.salu(f"s_mov_b32 s63, {f32hex(SCALE_LOG2E)}")
    a.salu(f"s_mov_b32 s66, {f32hex(-SCALE_LOG2E)}")
    V = a.valu
    V("v_lshrrev_b32", 8, "4", 0)
    V("v_and_b32", 9, "15", 0)
    V("v_lshlrev_b32", 10, "2", 8)
    V("v_xor_b32", 10, 10, 9)
    V("v_lshlrev_b32", 10, "4", 10)
    V("v_lshlrev_b32", 11, "8", 8)
    V("v_add_u32", 1, 10, 11)
    V("v_add_u32", 1, "s65", 1)
    a.salu("s_lshl_b32 s67, s60, 17")
    V("v_lshlrev_b32", 6, "13", 8)
    V("v_add_u32", 6, 6, 10)
    V("v_add_u32", 6, "s67", 6)
    V("v_xor_b32", 12, 9, 8)
    V("v_lshlrev_b32", 12, "4", 12)
    V("v_add_u32", 12, 12, 11)
    V("v_add_u32", 2, "s65", 12)
    for i in range(1, 4):
        V("v_xor_b32", 2 + i, str(64 * i), 2)
    a.salu("s_lshl_b32 s68, s7, 17")
    a.salu("s_lshl_b32 s69, s60, 15")
    a.salu("s_add_u32 s68, s68, s69")
    V("v_and_b32", 13, "31", 0)
    V("v_lshrrev_b32", 14, "5", 0)
    V("v_lshlrev_b32", 7, "10", 13)
    V("v_lshlrev_b32", 15, "4", 14)
    V("v_add_u32", 7, 7, 15)
    V("v_add_u32", 7, "s68", 7)

    def issue(key, slot):
        kind, idx = key
        a.salu(f"s_add_u32 m0, s65, {slot * 16384}", m0w=True)
        last = None
        if kind == 'W':
            for i in range(4):
                so = (64 * idx + 4 * i) * 8192 - 1024 * i
                a.salu(f"s_add_u32 s62, s64, {so}")
                last = a.dma4(6, WS, "s62", 1024 * i)
        else:
            a.salu(f"s_add_u32 s62, s61, {idx * 16384}")
            for i in range(4):
                if kind == 'K':
                    last = a.dma4(2 + i, KS, "s62", 1024 * i, KV_FLAGS)
                else:
                    last = a.dma4(1, VS, "s62", 1024 * i, KV_FLAGS)
        return last

    order = [('W', i) for i in range(8)] + [('K', i) for i in range(8)] + [('V', i) for i in range(8)]
    tm = TileMgr(a, 5, order, issue)
    XF = 128
    tm.issue(('W', 0))
    for ks in range(32):
        a.buf_load4(XF + 4 * ks, 7, XS, "0", ks * 32)
    tm.issue(('W', 1))
    tm.issue(('W', 2))
    tm.issue(('K', 0))
    tm.issue(('K', 1))

    def tr_addrs(hmul):
        V("v_lshrrev_b32", 16, "2", 0)
        V("v_and_b32", 16, "3", 16)
        V("v_lshrrev_b32", 17, "4", 0)
        V("v_and_b32", 17, "1", 17)
        V("v_and_b32", 18, "3", 0)
        V("v_lshrrev_b32", 19, "5", 0)
        V("v_lshlrev_b32", 19, str(8 + {4: 2, 8: 3}[hmul]), 19)
        V("v_mul_u32_u24", 20, "0x140", 16)
        V("v_add_u32", 19, 19, 20)
        V("v_lshlrev_b32", 17, "5", 17)
        V("v_add_u32", 19, 19, 17)
        V("v_lshlrev_b32", 18, "3", 18)
        V("v_add_u32", 24, 19, 18)
        for dt in range(1, 4):
            V("v_xor_b32", 24 + dt, str(64 * dt), 24)
        for dt in range(4):
            V("v_add_u32", 28 + dt, "0x8000", 24 + dt)

    def tr_read(d, dt, off):
        if off >= 32768:
            a.ds_read_tr(d, 28 + dt, off - 32768)
        else:
            a.ds_read_tr(d, 24 + dt, off)

    tr_addrs(8)

    RING, NR, D = 32, 8, 6
    QA = 64
    items = []
    for ks in range(32):
        j, kq = ks // 4, ks % 4
        for dt in range(4):
            def reads(reg, j=j, kq=kq, dt=dt):
                base = tm.base(('W', j)) + (16 * kq) * 256
                tr_read(reg, dt, base)
                tr_read(reg + 2, dt, base + 4 * 256)

            def mf(reg, ks=ks, dt=dt):
                a.mfma32(QA + 16 * dt, reg, XF + 4 * ks, None if ks == 0 else QA + 16 * dt)
            items.append(dict(tile=('W', j), first=(kq == 0 and dt == 0), mode='late', reads=reads, mfma=mf))
    run_pipeline(a, tm, items, {}, RING, NR, D)

    V("v_and_b32", 16, "31", 0)
    V("v_lshlrev_b32", 16, "8", 16)
    V("v_and_b32", 17, "15", 0)
    V("v_lshrrev_b32", 18, "5", 0)
    V("v_xor_b32", 17, 17, 18)
    V("v_lshlrev_b32", 17, "4", 17)
    V("v_add_u32", 8, 16, 17)
    for kk in range(1, 8):
        V("v_xor_b32", 8 + kk, str(32 * kk), 8)
    for kk in range(8):
        V("v_add_u32", 16 + kk, "0x8000", 8 + kk)
    V("v_mov_b32", 6, "0xff800000")
    V("v_mov_b32", 7, "0xff800000")
    QF = QA
    for kk in range(8):
        for i in range(4):
            a.cvt_pk(QF + 4 * kk + i, QA + 8 * kk + 2 * i, QA + 8 * kk + 2 * i + 1)
    for kk in range(8):
        a.swap32(QF + 4 * kk + 0, QF + 4 * kk + 2)
        a.swap32(QF + 4 * kk + 1, QF + 4 * kk + 3)

    SA = 96
    SP = 128
    items = []
    fillers = {}

    def post_sub(u):
        ops = []
        sa = SA + 16 * (u % 2)
        for i in range(8):
            mx = 6 + (i % 2)
            ops.append(lambda i=i, mx=mx: a.emit(
                f"v_max3_f32 v{mx}, v{sa + 2 * i}, v{sa + 2 * i + 1}, v{mx}", 'valu',
                w=[mx], r=[sa + 2 * i, sa + 2 * i + 1, mx]))
            ops.append(lambda i=i: a.cvt_pk(SP + 8 * u + i, sa + 2 * i, sa + 2 * i + 1))
        return ops

    for u in range(16):
        j, st = u // 2, u % 2
        for kk in range(8):
            def reads(reg, j=j, st=st, kk=kk):
                off = tm.base(('K', j)) + st * 8192
                if off >= 32768:
                    a.ds_read_b128(reg, 16 + kk, off - 32768)
                else:
                    a.ds_read_b128(reg, 8 + kk, off)

            def mf(reg, u=u, kk=kk):
                sa = SA + 16 * (u % 2)
                a.mfma32(sa, reg, QF + 4 * kk, None if kk == 0 else sa)
            items.append(dict(tile=('K', j), first=(st == 0 and kk == 0), mode=('late' if j == 0 else 'early'),
                              reads=reads, mfma=mf))
        if u >= 1:
            merge(fillers, spread(post_sub(u - 1), 8 * u + 2, 6))
    run_pipeline(a, tm, items, fillers, RING, NR, D)
    for f in post_sub(15):
        f()
    V("v_max_f32", 6, 6, 7)
    V("v_mov_b32", 7, 6)
    a.swap32(6, 7)
    V("v_max_f32", 6, 6, 7)
    a.cvt_pk(7, 6, 6)
    V("v_lshlrev_b32", 7, "16", 7)
    V("v_mul_f32", 2, "s66", 7)
    V("v_mov_b32", 3, "0")
    V("v_mov_b32", 4, "0")
    tr_addrs(4)

    OA = 64
    T = 8
    PB = 16

    def p_ops(s):
        ops = []
        sp = SP + 4 * s
        pb = PB + 4 * (s % 2)
        for i in range(4):
            ops.append(lambda i=i: V("v_lshlrev_b32", T + 2 * i, "16", sp + i))
            ops.append(lambda i=i: V("v_and_b32", T + 2 * i + 1, "0xffff0000", sp + i))
        for i in range(8):
            ops.append(lambda i=i: V("v_fma_f32", T + i, T + i, "s63", 2))
        for i in range(8):
            ops.append(lambda i=i: V("v_exp_f32", T + i, T + i, kind='trans'))
        for i in range(4):
            ops.append(lambda i=i: V("v_add_f32", 3, 3, T + 2 * i))
            ops.append(lambda i=i: V("v_add_f32", 4, 4, T + 2 * i + 1))
            ops.append(lambda i=i: a.cvt_pk(pb + i, T + 2 * i, T + 2 * i + 1))
        return ops

    for f in p_ops(0):
        f()
    items = []
    fillers = {}
    for s in range(32):
        j, m = s // 4, s % 4
        for dt in range(4):
            def reads(reg, j=j, m=m, dt=dt):
                base = tm.base(('V', j)) + (16 * m) * 256
                tr_read(reg, dt, base)
                tr_read(reg + 2, dt, base + 8 * 256)

            def mf(reg, s=s, dt=dt):
                a.mfma32(OA + 16 * dt, reg, PB + 4 * (s % 2), None if s == 0 else OA + 16 * dt)
            items.append(dict(tile=('V', j), first=(m == 0 and dt == 0), mode=('late' if j == 0 else 'early'),
                              reads=reads, mfma=mf))
        if s < 31:
            merge(fillers, spread(p_ops(s + 1), 4 * s, 4))
    run_pipeline(a, tm, items, fillers, RING, NR, D)

    V("v_add_f32", 3, 3, 4)
    V("v_mov_b32", 4, 3)
    a.swap32(3, 4)
    V("v_add_f32", 3, 3, 4)
    V("v_rcp_f32", 3, 3, kind='trans')
    a.salu("s_lshl_b32 s68, s5, 24")
    a.salu("s_lshl_b32 s69, s7, 20")
    a.salu("s_add_u32 s68, s68, s69")
    a.salu("s_lshl_b32 s69, s60, 18")
    a.salu("s_add_u32 s68, s68, s69")
    a.salu("s_lshl_b32 s69, s8, 13")
    a.salu("s_add_u32 s68, s68, s69")
    V("v_lshlrev_b32", 7, "4", 0)
    for j in range(8):
        for i in range(8):
            V("v_mul_f32", OA + 8 * j + i, OA + 8 * j + i, 3)
        for i in range(4):
            a.cvt_pk(OA + 4 * j + i, OA + 8 * j + 2 * i, OA + 8 * j + 2 * i + 1)
    for j in range(8):
        a.swap32(OA + 4 * j + 0, OA + 4 * j + 2)
        a.swap32(OA + 4 * j + 1, OA + 4 * j + 3)
    for j in range(8):
        if j == 4:
            a.salu("s_add_u32 s68, s68, 4096")
        a.buf_store4(OA + 4 * j, 7, OS, "s68", (j % 4) * 1024)
    a.raw("L_attn_end:")
    a.raw("    s_endpgm")
    return a


def gen_k2():
    a = Asm()
    a.raw(".p2align 8")
    a.raw("oproj_kernel:")
    a.salu("s_cmp_ge_u32 s2, 256")
    a.salu("s_cbranch_scc1 L_oproj_end")
    a.salu("s_load_dwordx2 s[16:17], s[0:1], 32")
    a.salu("s_load_dwordx2 s[18:19], s[0:1], 72")
    a.salu("s_load_dwordx2 s[20:21], s[0:1], 80")
    a.salu("s_load_dwordx2 s[22:23], s[0:1], 96")
    a.salu("s_and_b32 s3, s2, 7")
    a.salu("s_lshr_b32 s4, s2, 3")
    a.salu("s_lshr_b32 s5, s3, 2")
    a.salu("s_and_b32 s6, s3, 3")
    a.salu("s_lshl_b32 s6, s6, 2")
    a.salu("s_lshr_b32 s7, s4, 3")
    a.salu("s_add_u32 s6, s6, s7")
    a.salu("s_and_b32 s7, s4, 7")
    a.emit("v_lshrrev_b32 v1, 6, v0", 'valu', w=[1], r=[0])
    a.emit("v_and_b32 v0, 63, v0", 'valu', w=[0], r=[0])
    a.emit("v_readfirstlane_b32 s60, v1", 'rfl', r=[1], sw=[60])
    a.salu("s_waitcnt lgkmcnt(0)")
    a.salu("s_cmp_eq_u32 s5, 0")
    a.salu("s_cselect_b64 s[10:11], s[16:17], s[18:19]")
    make_srd(a, 40, 10, 4 << 20)
    make_srd(a, 44, 22, 32 << 20)
    make_srd(a, 48, 20, 4 << 20)
    WO, OS, OUT = 40, 44, 48
    V = a.valu
    a.salu("s_lshl_b32 s65, s60, 12")
    a.salu("s_lshl_b32 s67, s60, 15")
    a.salu("s_lshl_b32 s64, s7, 7")
    V("v_lshrrev_b32", 8, "3", 0)
    V("v_lshlrev_b32", 8, "10", 8)
    V("v_and_b32", 9, "7", 0)
    V("v_lshrrev_b32", 10, "4", 0)
    V("v_and_b32", 10, "1", 10)
    V("v_lshlrev_b32", 10, "2", 10)
    V("v_xor_b32", 9, 9, 10)
    V("v_lshlrev_b32", 9, "4", 9)
    V("v_add_u32", 1, 8, 9)
    V("v_add_u32", 1, "s67", 1)
    a.salu("s_lshl_b32 s68, s5, 24")
    a.salu("s_lshl_b32 s69, s6, 20")
    a.salu("s_add_u32 s68, s68, s69")
    a.salu("s_lshl_b32 s69, s60, 18")
    a.salu("s_add_u32 s68, s68, s69")
    V("v_lshlrev_b32", 2, "4", 0)
    V("v_lshrrev_b32", 16, "2", 0)
    V("v_and_b32", 16, "3", 16)
    V("v_lshrrev_b32", 17, "4", 0)
    V("v_and_b32", 17, "1", 17)
    V("v_and_b32", 18, "3", 0)
    V("v_lshrrev_b32", 19, "5", 0)
    V("v_lshlrev_b32", 19, "10", 19)
    V("v_lshlrev_b32", 20, "7", 16)
    V("v_add_u32", 19, 19, 20)
    V("v_lshrrev_b32", 20, "1", 16)
    V("v_lshlrev_b32", 20, "6", 20)
    V("v_add_u32", 19, 19, 20)
    V("v_lshlrev_b32", 17, "5", 17)
    V("v_add_u32", 19, 19, 17)
    V("v_lshlrev_b32", 18, "3", 18)
    V("v_add_u32", 4, 19, 18)
    V("v_xor_b32", 5, "64", 4)
    V("v_add_u32", 6, "0xc000", 4)
    V("v_add_u32", 7, "0xc000", 5)

    NSLOT = 6

    def issue(key, slot):
        idx = key[1]
        a.salu(f"s_add_u32 m0, s65, {slot * 16384}", m0w=True)
        last = None
        for i in range(4):
            so = idx * 128 * 1024 + 8192 * i - 1024 * i
            a.salu(f"s_add_u32 s62, s64, {so}")
            last = a.dma4(1, WO, "s62", 1024 * i)
        return last

    order = [('W', i) for i in range(32)]
    tm = TileMgr(a, NSLOT, order, issue)
    OF, NOF, OD = 96, 24, 20
    ACC = 64
    ld_state = dict(n=0)

    def load_frag():
        n = ld_state['n']
        if n >= 256:
            return
        if n % 4 == 0 and n > 0:
            a.salu("s_add_u32 s68, s68, 4096")
        a.buf_load4(OF + 4 * (n % NOF), 2, OS, "s68", (n % 4) * 1024)
        ld_state['n'] = n + 1

    tm.issue(('W', 0))
    for _ in range(8):
        load_frag()
    for i in range(1, NSLOT):
        tm.issue(('W', i))
    for _ in range(OD - 8):
        load_frag()

    RING, NR, D = 32, 8, 6
    items = []
    fillers = {}
    for s in range(256):
        j, q = s // 8, s % 8
        for nt in range(2):
            def reads(reg, j=j, q=q, nt=nt):
                base = tm.base(('W', j)) + (16 * q) * 128
                for t in range(2):
                    off = base + t * 4 * 128
                    if off >= 49152:
                        a.ds_read_tr(reg + 2 * t, 6 + nt, off - 49152)
                    else:
                        a.ds_read_tr(reg + 2 * t, 4 + nt, off)

            def mf(reg, s=s, nt=nt):
                a.mfma32(ACC + 16 * nt, reg, OF + 4 * (s % NOF), None if s == 0 else ACC + 16 * nt)
            items.append(dict(tile=('W', j), first=(q == 0 and nt == 0), mode=('late' if j == 0 else 'early'),
                              reads=reads, mfma=mf))
        fillers.setdefault(2 * s + 1, []).append(load_frag)
    run_pipeline(a, tm, items, fillers, RING, NR, D)

    a.salu("s_lshl_b32 s68, s6, 18")
    a.salu("s_lshl_b32 s69, s60, 16")
    a.salu("s_add_u32 s68, s68, s69")
    a.salu("s_lshl_b32 s69, s5, 10")
    a.salu("s_add_u32 s68, s68, s69")
    a.salu("s_add_u32 s68, s68, s64")
    V("v_and_b32", 8, "31", 0)
    V("v_lshlrev_b32", 8, "11", 8)
    V("v_lshrrev_b32", 9, "5", 0)
    V("v_lshlrev_b32", 9, "4", 9)
    V("v_add_u32", 8, 8, 9)
    for j in range(4):
        for i in range(4):
            a.cvt_pk(ACC + 4 * j + i, ACC + 8 * j + 2 * i, ACC + 8 * j + 2 * i + 1)
    for j in range(4):
        a.swap32(ACC + 4 * j + 0, ACC + 4 * j + 2)
        a.swap32(ACC + 4 * j + 1, ACC + 4 * j + 3)
    for j in range(4):
        a.buf_store4(ACC + 4 * j, 8, OUT, "s68", j * 32)
    a.raw("L_oproj_end:")
    a.raw("    s_endpgm")
    return a


HEADER = """; Kernarg layout (104 bytes, ptrs only, base s[0:1]):
; @launch kernel=attn_kernel grid=(1024,1,1) block=(256,1,1) lds=81920
; @launch kernel=oproj_kernel grid=(256,1,1) block=(256,1,1) lds=98304
.amdgcn_target "amdgcn-amd-amdhsa--gfx950"
.text
.globl attn_kernel
.type attn_kernel,@function
.globl oproj_kernel
.type oproj_kernel,@function
"""

KD = """.amdhsa_kernel {name}
  .amdhsa_next_free_vgpr {vgpr}
  .amdhsa_next_free_sgpr 102
  .amdhsa_accum_offset {acc}
  .amdhsa_group_segment_fixed_size 0
  .amdhsa_kernarg_size 104
  .amdhsa_user_sgpr_count 2
  .amdhsa_user_sgpr_kernarg_segment_ptr 1
  .amdhsa_system_sgpr_workgroup_id_x 1
.end_amdhsa_kernel
"""


def main():
    k1 = gen_k1()
    k2 = gen_k2()
    txt = HEADER + k1.text() + k2.text()
    txt += '.section .rodata,"a"\n.p2align 6\n'
    txt += KD.format(name="attn_kernel", vgpr=256, acc=256)
    txt += ".p2align 6\n"
    txt += KD.format(name="oproj_kernel", vgpr=192, acc=192)
    out = sys.argv[1] if len(sys.argv) > 1 else f"cdna_kernels/{NAME}.s"
    open(out, "w").write(txt)
    print("k1 inst", k1.n_inst, "nops", k1.n_nop, " k2 inst", k2.n_inst, "nops", k2.n_nop, file=sys.stderr)


main()
```

```python
import struct
import sys
import os

sys.path.insert(0, os.path.dirname(os.path.abspath(__file__)))
from asmgen import Asm, R, vr

NAME = "concat_heads__mha_block_cached__gqa_block_cached__near_ridge"


def f32hex(x):
    return "0x%08x" % struct.unpack("<I", struct.pack("<f", x))[0]


SCALE_LOG2E = (128 ** -0.5) * 1.4426950408889634
KV_FLAGS = os.environ.get("KV_FLAGS", " nt")
NO_COMPUTE = os.environ.get("NO_COMPUTE", "") == "1"
NITEMS = int(os.environ.get("NITEMS", "2"))


class TileMgr:
    def __init__(self, a, nslots, order, issue_order, issue_fn, slot_bytes=16384):
        self.a = a
        self.free = list(range(nslots))
        self.order = order
        self.issue_order = list(issue_order)
        self.index = {k: i for i, k in enumerate(order)}
        self.slot = {}
        self.seq = {}
        self.issue_fn = issue_fn
        self.freed = set()
        self.slot_bytes = slot_bytes

    def issue_next(self):
        key = self.issue_order.pop(0)
        s = self.free.pop(0)
        self.slot[key] = s
        self.seq[key] = self.issue_fn(key, s)

    def fill(self):
        while self.free and self.issue_order:
            self.issue_next()

    def ready(self, key, mode):
        a = self.a
        t = self.index[key]
        assert key in self.slot, key
        a.wait_vm_seq(self.seq[key])
        a.barrier()
        lim = t if mode == 'late' else t - 1
        for k in self.order[:max(lim, 0)]:
            if k not in self.freed:
                self.freed.add(k)
                self.free.append(self.slot[k])
        self.fill()

    def base(self, key):
        return self.slot[key] * self.slot_bytes


def run_pipeline(a, tm, items, fillers, ring_base, NR, D):
    n = len(items)
    nxt = 0
    for i in range(n):
        while nxt < n and nxt <= i + D:
            it = items[nxt]
            if it.get('first'):
                if it['mode'] == 'late' and nxt > i:
                    break
                tm.ready(it['tile'], it['mode'])
            if not NO_COMPUTE:
                it['reads'](ring_base + 4 * (nxt % NR))
            nxt += 1
        for f in fillers.get(i, []):
            if NO_COMPUTE and not getattr(f, 'mem', False):
                continue
            f()
        if not NO_COMPUTE:
            items[i]['mfma'](ring_base + 4 * (i % NR))


def spread(ops, start, count):
    res = {}
    per = (len(ops) + count - 1) // count
    for j, op in enumerate(ops):
        res.setdefault(start + j // per, []).append(op)
    return res


def merge(dst, src):
    for k, v in src.items():
        dst.setdefault(k, []).extend(v)


def make_srd(a, d, ptr, nbytes):
    a.salu(f"s_mov_b32 s{d}, s{ptr}")
    a.salu(f"s_and_b32 s{d + 1}, s{ptr + 1}, 0xffff")
    a.salu(f"s_mov_b32 s{d + 2}, {nbytes}")
    a.salu(f"s_mov_b32 s{d + 3}, 0x00020000")


def gen_k1():
    nwg = 1024 // NITEMS
    a = Asm()
    a.raw(".p2align 8")
    a.raw("attn_kernel:")
    a.salu(f"s_cmp_ge_u32 s2, {nwg}")
    a.salu("s_cbranch_scc1 L_attn_end")
    a.salu("s_load_dwordx16 s[16:31], s[0:1], 0")
    a.salu("s_load_dwordx4 s[32:35], s[0:1], 64")
    a.salu("s_load_dwordx2 s[36:37], s[0:1], 96")
    a.salu("s_and_b32 s3, s2, 7")
    a.salu("s_lshr_b32 s4, s2, 3")
    a.salu("s_lshr_b32 s5, s3, 2")
    a.salu("s_and_b32 s6, s3, 3")
    a.salu("s_lshr_b32 s7, s4, 3")
    a.salu("s_and_b32 s8, s4, 7")
    a.salu("s_lshl_b32 s6, s6, 3")
    a.salu("s_add_u32 s8, s8, s6")
    a.emit("v_lshrrev_b32 v1, 6, v0", 'valu', w=[1], r=[0])
    a.emit("v_and_b32 v0, 63, v0", 'valu', w=[0], r=[0])
    a.emit("v_readfirstlane_b32 s60, v1", 'rfl', r=[1], sw=[60])
    a.salu("s_waitcnt lgkmcnt(0)")
    a.salu("s_cmp_eq_u32 s5, 0")
    a.salu("s_cselect_b64 s[10:11], s[16:17], s[26:27]")
    a.salu("s_cselect_b64 s[12:13], s[18:19], s[28:29]")
    a.salu("s_cselect_b64 s[14:15], s[20:21], s[30:31]")
    a.salu("s_cselect_b64 s[38:39], s[22:23], s[32:33]")
    make_srd(a, 40, 10, 2 << 20)
    make_srd(a, 44, 12, 64 << 20)
    make_srd(a, 48, 14, 64 << 20)
    make_srd(a, 52, 38, 4 << 20)
    make_srd(a, 56, 36, 32 << 20)
    XS, KS, VS, WS, OS = 40, 44, 48, 52, 56
    BSTEP = 16 // NITEMS
    a.salu("s_lshl_b32 s61, s7, 5")
    a.salu("s_add_u32 s61, s61, s8")
    a.salu("s_lshl_b32 s61, s61, 17")
    a.salu("s_lshl_b32 s64, s8, 8")
    a.salu("s_lshl_b32 s65, s60, 12")
    a.salu(f"s_mov_b32 s63, {f32hex(SCALE_LOG2E)}")
    a.salu(f"s_mov_b32 s66, {f32hex(-SCALE_LOG2E)}")
    V = a.valu
    V("v_lshrrev_b32", 8, "4", 0)
    V("v_and_b32", 9, "15", 0)
    V("v_lshlrev_b32", 10, "2", 8)
    V("v_xor_b32", 10, 10, 9)
    V("v_lshlrev_b32", 10, "4", 10)
    V("v_lshlrev_b32", 11, "8", 8)
    V("v_add_u32", 1, 10, 11)
    V("v_add_u32", 1, "s65", 1)
    a.salu("s_lshl_b32 s67, s60, 17")
    V("v_lshlrev_b32", 6, "13", 8)
    V("v_add_u32", 6, 6, 10)
    V("v_add_u32", 6, "s67", 6)
    V("v_xor_b32", 12, 9, 8)
    V("v_lshlrev_b32", 12, "4", 12)
    V("v_add_u32", 12, 12, 11)
    V("v_add_u32", 2, "s65", 12)
    a.salu("s_lshl_b32 s68, s7, 17")
    a.salu("s_lshl_b32 s69, s60, 15")
    a.salu("s_add_u32 s68, s68, s69")
    V("v_and_b32", 13, "31", 0)
    V("v_lshrrev_b32", 14, "5", 0)
    V("v_lshlrev_b32", 7, "10", 13)
    V("v_lshlrev_b32", 15, "4", 14)
    V("v_add_u32", 7, 7, 15)
    V("v_add_u32", 7, "s68", 7)

    def issue(key, slot):
        kind, it, idx = key
        a.salu(f"s_add_u32 m0, s65, {slot * 16384}", m0w=True)
        last = None
        if kind == 'W':
            for i in range(4):
                so = (64 * idx + 4 * i) * 8192 - 1024 * i
                a.salu(f"s_add_u32 s62, s64, {so}")
                last = a.dma4(6, WS, "s62", 1024 * i)
        else:
            a.salu(f"s_add_u32 s62, s61, {idx * 16384 + it * BSTEP * 32 * 131072}")
            for i in range(4):
                if kind == 'K':
                    if i == 0:
                        last = a.dma4(2, KS, "s62", 0, KV_FLAGS)
                    else:
                        V("v_xor_b32", 3, str(64 * i), 2)
                        last = a.dma4(3, KS, "s62", 1024 * i, KV_FLAGS)
                else:
                    last = a.dma4(1, VS, "s62", 1024 * i, KV_FLAGS)
        return last

    order, iorder = [], []
    for it in range(NITEMS):
        order += [('W', it, i) for i in range(8)] + [('K', it, i) for i in range(8)] + [('V', it, i) for i in range(8)]
        iorder += [('W', it, 0), ('W', it, 1), ('W', it, 2), ('K', it, 0), ('K', it, 1)]
        iorder += [('W', it, i) for i in range(3, 8)] + [('K', it, i) for i in range(2, 8)] + [('V', it, i) for i in range(8)]
    tm = TileMgr(a, 5, order, iorder, issue)
    XF = 128

    def xload(it, ks):
        if it == 0:
            a.buf_load4(XF + 4 * ks, 7, XS, "0", ks * 32)
        else:
            a.salu(f"s_mov_b32 s71, {it * BSTEP * 131072}")
            a.buf_load4(XF + 4 * ks, 7, XS, "s71", ks * 32)

    tm.issue_next()
    for ks in range(32):
        xload(0, ks)
    tm.fill()

    def tr_addrs(hmul):
        V("v_lshrrev_b32", 16, "2", 0)
        V("v_and_b32", 16, "3", 16)
        V("v_lshrrev_b32", 17, "4", 0)
        V("v_and_b32", 17, "1", 17)
        V("v_and_b32", 18, "3", 0)
        V("v_lshrrev_b32", 19, "5", 0)
        V("v_lshlrev_b32", 19, str(8 + {4: 2, 8: 3}[hmul]), 19)
        V("v_mul_u32_u24", 20, "0x140", 16)
        V("v_add_u32", 19, 19, 20)
        V("v_lshlrev_b32", 17, "5", 17)
        V("v_add_u32", 19, 19, 17)
        V("v_lshlrev_b32", 18, "3", 18)
        V("v_add_u32", 24, 19, 18)
        for dt in range(1, 4):
            V("v_xor_b32", 24 + dt, str(64 * dt), 24)
        for dt in range(4):
            V("v_add_u32", 28 + dt, "0x8000", 24 + dt)

    def tr_read(d, dt, off):
        if off >= 32768:
            a.ds_read_tr(d, 28 + dt, off - 32768)
        else:
            a.ds_read_tr(d, 24 + dt, off)

    RING, NR, D = 32, 8, 6
    QA = 64
    QF = QA
    SA = 96
    SP = 128
    OA = 64
    T = 8
    PB = 16
    MX0, MX1 = 4, 5
    NEGMC, LS = 4, 5

    for it in range(NITEMS):
        tr_addrs(8)
        items = []
        for ks in range(32):
            j, kq = ks // 4, ks % 4
            for dt in range(4):
                def reads(reg, j=j, kq=kq, dt=dt):
                    base = tm.base(('W', it, j)) + (16 * kq) * 256
                    tr_read(reg, dt, base)
                    tr_read(reg + 2, dt, base + 4 * 256)

                def mf(reg, ks=ks, dt=dt):
                    a.mfma32(QA + 16 * dt, reg, XF + 4 * ks, None if ks == 0 else QA + 16 * dt)
                items.append(dict(tile=('W', it, j), first=(kq == 0 and dt == 0), mode='late', reads=reads, mfma=mf))
        run_pipeline(a, tm, items, {}, RING, NR, D)

        V("v_and_b32", 16, "31", 0)
        V("v_lshlrev_b32", 16, "8", 16)
        V("v_and_b32", 17, "15", 0)
        V("v_lshrrev_b32", 18, "5", 0)
        V("v_xor_b32", 17, 17, 18)
        V("v_lshlrev_b32", 17, "4", 17)
        V("v_add_u32", 8, 16, 17)
        for kk in range(1, 8):
            V("v_xor_b32", 8 + kk, str(32 * kk), 8)
        for kk in range(8):
            V("v_add_u32", 16 + kk, "0x8000", 8 + kk)
        V("v_mov_b32", MX0, "0xff800000")
        V("v_mov_b32", MX1, "0xff800000")
        for kk in range(8):
            for i in range(4):
                a.cvt_pk(QF + 4 * kk + i, QA + 8 * kk + 2 * i, QA + 8 * kk + 2 * i + 1)
        for kk in range(8):
            a.swap32(QF + 4 * kk + 0, QF + 4 * kk + 2)
            a.swap32(QF + 4 * kk + 1, QF + 4 * kk + 3)

        items = []
        fillers = {}

        def post_sub(u):
            ops = []
            sa = SA + 16 * (u % 2)
            for i in range(8):
                mx = MX0 + (i % 2)
                ops.append(lambda i=i, mx=mx: a.emit(
                    f"v_max3_f32 v{mx}, v{sa + 2 * i}, v{sa + 2 * i + 1}, v{mx}", 'valu',
                    w=[mx], r=[sa + 2 * i, sa + 2 * i + 1, mx]))
                ops.append(lambda i=i: a.cvt_pk(SP + 8 * u + i, sa + 2 * i, sa + 2 * i + 1))
            return ops

        for u in range(16):
            j, st = u // 2, u % 2
            for kk in range(8):
                def reads(reg, j=j, st=st, kk=kk):
                    off = tm.base(('K', it, j)) + st * 8192
                    if off >= 32768:
                        a.ds_read_b128(reg, 16 + kk, off - 32768)
                    else:
                        a.ds_read_b128(reg, 8 + kk, off)

                def mf(reg, u=u, kk=kk):
                    sa = SA + 16 * (u % 2)
                    a.mfma32(sa, reg, QF + 4 * kk, None if kk == 0 else sa)
                items.append(dict(tile=('K', it, j), first=(st == 0 and kk == 0),
                                  mode=('late' if j == 0 else 'early'), reads=reads, mfma=mf))
            if u >= 1:
                merge(fillers, spread(post_sub(u - 1), 8 * u + 2, 6))
        run_pipeline(a, tm, items, fillers, RING, NR, D)
        for f in post_sub(15):
            f()
        V("v_max_f32", MX0, MX0, MX1)
        V("v_mov_b32", MX1, MX0)
        a.swap32(MX0, MX1)
        V("v_max_f32", MX0, MX0, MX1)
        a.cvt_pk(MX1, MX0, MX0)
        V("v_lshlrev_b32", MX1, "16", MX1)
        V("v_mul_f32", NEGMC, "s66", MX1)
        V("v_mov_b32", LS, "0")
        tr_addrs(4)

        def p_ops(s):
            ops = []
            sp = SP + 4 * s
            pb = PB + 4 * (s % 2)
            for i in range(4):
                ops.append(lambda i=i: V("v_lshlrev_b32", T + 2 * i, "16", sp + i))
                ops.append(lambda i=i: V("v_and_b32", T + 2 * i + 1, "0xffff0000", sp + i))
            for i in range(8):
                ops.append(lambda i=i: V("v_fma_f32", T + i, T + i, "s63", NEGMC))
            for i in range(8):
                ops.append(lambda i=i: V("v_exp_f32", T + i, T + i, kind='trans'))
            for i in range(4):
                ops.append(lambda i=i: V("v_add_f32", LS, LS, T + 2 * i))
                ops.append(lambda i=i: a.cvt_pk(pb + i, T + 2 * i, T + 2 * i + 1))
                ops.append(lambda i=i: V("v_add_f32", LS, LS, T + 2 * i + 1))
            return ops

        for f in p_ops(0):
            f()
        items = []
        fillers = {}
        for s in range(32):
            j, m = s // 4, s % 4
            for dt in range(4):
                def reads(reg, j=j, m=m, dt=dt):
                    base = tm.base(('V', it, j)) + (16 * m) * 256
                    tr_read(reg, dt, base)
                    tr_read(reg + 2, dt, base + 8 * 256)

                def mf(reg, s=s, dt=dt):
                    a.mfma32(OA + 16 * dt, reg, PB + 4 * (s % 2), None if s == 0 else OA + 16 * dt)
                items.append(dict(tile=('V', it, j), first=(m == 0 and dt == 0),
                                  mode=('late' if j == 0 else 'early'), reads=reads, mfma=mf))
            if s < 31:
                merge(fillers, spread(p_ops(s + 1), 4 * s, 4))
            if it + 1 < NITEMS:
                def xl(s=s):
                    xload(it + 1, s)
                xl.mem = True
                fillers.setdefault(4 * s + 3, []).append(xl)
        run_pipeline(a, tm, items, fillers, RING, NR, D)

        V("v_mov_b32", 8, LS)
        a.swap32(LS, 8)
        V("v_add_f32", LS, LS, 8)
        V("v_rcp_f32", LS, LS, kind='trans')
        a.salu("s_lshl_b32 s68, s5, 24")
        a.salu("s_lshl_b32 s69, s7, 20")
        a.salu("s_add_u32 s68, s68, s69")
        a.salu("s_lshl_b32 s69, s60, 18")
        a.salu("s_add_u32 s68, s68, s69")
        a.salu("s_lshl_b32 s69, s8, 13")
        a.salu("s_add_u32 s68, s68, s69")
        if it:
            a.salu(f"s_add_u32 s68, s68, {it * BSTEP << 20}")
        V("v_lshlrev_b32", 8, "4", 0)
        for j in range(8):
            for i in range(8):
                V("v_mul_f32", OA + 8 * j + i, OA + 8 * j + i, LS)
            for i in range(4):
                a.cvt_pk(OA + 4 * j + i, OA + 8 * j + 2 * i, OA + 8 * j + 2 * i + 1)
        for j in range(8):
            a.swap32(OA + 4 * j + 0, OA + 4 * j + 2)
            a.swap32(OA + 4 * j + 1, OA + 4 * j + 3)
        for j in range(8):
            if j == 4:
                a.salu("s_add_u32 s68, s68, 4096")
            a.buf_store4(OA + 4 * j, 8, OS, "s68", (j % 4) * 1024)
    a.raw("L_attn_end:")
    a.raw("    s_endpgm")
    return a


def gen_k2():
    a = Asm()
    a.raw(".p2align 8")
    a.raw("oproj_kernel:")
    a.salu("s_cmp_ge_u32 s2, 256")
    a.salu("s_cbranch_scc1 L_oproj_end")
    a.salu("s_load_dwordx2 s[16:17], s[0:1], 32")
    a.salu("s_load_dwordx2 s[18:19], s[0:1], 72")
    a.salu("s_load_dwordx2 s[20:21], s[0:1], 80")
    a.salu("s_load_dwordx2 s[22:23], s[0:1], 96")
    a.salu("s_and_b32 s3, s2, 7")
    a.salu("s_lshr_b32 s4, s2, 3")
    a.salu("s_lshr_b32 s5, s3, 2")
    a.salu("s_and_b32 s6, s3, 3")
    a.salu("s_lshl_b32 s6, s6, 2")
    a.salu("s_lshr_b32 s7, s4, 3")
    a.salu("s_add_u32 s6, s6, s7")
    a.salu("s_and_b32 s7, s4, 7")
    a.emit("v_lshrrev_b32 v1, 6, v0", 'valu', w=[1], r=[0])
    a.emit("v_and_b32 v0, 63, v0", 'valu', w=[0], r=[0])
    a.emit("v_readfirstlane_b32 s60, v1", 'rfl', r=[1], sw=[60])
    a.salu("s_waitcnt lgkmcnt(0)")
    a.salu("s_cmp_eq_u32 s5, 0")
    a.salu("s_cselect_b64 s[10:11], s[16:17], s[18:19]")
    make_srd(a, 40, 10, 4 << 20)
    make_srd(a, 44, 22, 32 << 20)
    make_srd(a, 48, 20, 4 << 20)
    WO, OS, OUT = 40, 44, 48
    V = a.valu
    a.salu("s_lshl_b32 s65, s60, 12")
    a.salu("s_lshl_b32 s67, s60, 15")
    a.salu("s_lshl_b32 s64, s7, 7")
    V("v_lshrrev_b32", 8, "3", 0)
    V("v_lshlrev_b32", 8, "10", 8)
    V("v_and_b32", 9, "7", 0)
    V("v_lshrrev_b32", 10, "4", 0)
    V("v_and_b32", 10, "1", 10)
    V("v_lshlrev_b32", 10, "2", 10)
    V("v_xor_b32", 9, 9, 10)
    V("v_lshlrev_b32", 9, "4", 9)
    V("v_add_u32", 1, 8, 9)
    V("v_add_u32", 1, "s67", 1)
    a.salu("s_lshl_b32 s68, s5, 24")
    a.salu("s_lshl_b32 s69, s6, 20")
    a.salu("s_add_u32 s68, s68, s69")
    a.salu("s_lshl_b32 s69, s60, 18")
    a.salu("s_add_u32 s68, s68, s69")
    V("v_lshlrev_b32", 2, "4", 0)
    V("v_lshrrev_b32", 16, "2", 0)
    V("v_and_b32", 16, "3", 16)
    V("v_lshrrev_b32", 17, "4", 0)
    V("v_and_b32", 17, "1", 17)
    V("v_and_b32", 18, "3", 0)
    V("v_lshrrev_b32", 19, "5", 0)
    V("v_lshlrev_b32", 19, "10", 19)
    V("v_lshlrev_b32", 20, "7", 16)
    V("v_add_u32", 19, 19, 20)
    V("v_lshrrev_b32", 20, "1", 16)
    V("v_lshlrev_b32", 20, "6", 20)
    V("v_add_u32", 19, 19, 20)
    V("v_lshlrev_b32", 17, "5", 17)
    V("v_add_u32", 19, 19, 17)
    V("v_lshlrev_b32", 18, "3", 18)
    V("v_add_u32", 4, 19, 18)
    V("v_xor_b32", 5, "64", 4)
    V("v_add_u32", 6, "0xc000", 4)
    V("v_add_u32", 7, "0xc000", 5)

    NSLOT = 6

    def issue(key, slot):
        idx = key[1]
        a.salu(f"s_add_u32 m0, s65, {slot * 16384}", m0w=True)
        last = None
        for i in range(4):
            so = idx * 128 * 1024 + 8192 * i - 1024 * i
            a.salu(f"s_add_u32 s62, s64, {so}")
            last = a.dma4(1, WO, "s62", 1024 * i)
        return last

    order = [('W', i) for i in range(32)]
    tm = TileMgr(a, NSLOT, order, order, issue)
    OF, NOF, OD = 96, 24, 20
    ACC = 64
    ld_state = dict(n=0)

    def load_frag():
        n = ld_state['n']
        if n >= 256:
            return
        if n % 4 == 0 and n > 0:
            a.salu("s_add_u32 s68, s68, 4096")
        a.buf_load4(OF + 4 * (n % NOF), 2, OS, "s68", (n % 4) * 1024)
        ld_state['n'] = n + 1

    tm.issue_next()
    for _ in range(8):
        load_frag()
    tm.fill()
    for _ in range(OD - 8):
        load_frag()

    RING, NR, D = 32, 8, 6
    items = []
    fillers = {}
    for s in range(256):
        j, q = s // 8, s % 8
        for nt in range(2):
            def reads(reg, j=j, q=q, nt=nt):
                base = tm.base(('W', j)) + (16 * q) * 128
                for t in range(2):
                    off = base + t * 4 * 128
                    if off >= 49152:
                        a.ds_read_tr(reg + 2 * t, 6 + nt, off - 49152)
                    else:
                        a.ds_read_tr(reg + 2 * t, 4 + nt, off)

            def mf(reg, s=s, nt=nt):
                a.mfma32(ACC + 16 * nt, reg, OF + 4 * (s % NOF), None if s == 0 else ACC + 16 * nt)
            items.append(dict(tile=('W', j), first=(q == 0 and nt == 0), mode=('late' if j == 0 else 'early'),
                              reads=reads, mfma=mf))
        fillers.setdefault(2 * s + 1, []).append(load_frag)
    run_pipeline(a, tm, items, fillers, RING, NR, D)

    a.salu("s_lshl_b32 s68, s6, 18")
    a.salu("s_lshl_b32 s69, s60, 16")
    a.salu("s_add_u32 s68, s68, s69")
    a.salu("s_lshl_b32 s69, s5, 10")
    a.salu("s_add_u32 s68, s68, s69")
    a.salu("s_add_u32 s68, s68, s64")
    V("v_and_b32", 8, "31", 0)
    V("v_lshlrev_b32", 8, "11", 8)
    V("v_lshrrev_b32", 9, "5", 0)
    V("v_lshlrev_b32", 9, "4", 9)
    V("v_add_u32", 8, 8, 9)
    for j in range(4):
        for i in range(4):
            a.cvt_pk(ACC + 4 * j + i, ACC + 8 * j + 2 * i, ACC + 8 * j + 2 * i + 1)
    for j in range(4):
        a.swap32(ACC + 4 * j + 0, ACC + 4 * j + 2)
        a.swap32(ACC + 4 * j + 1, ACC + 4 * j + 3)
    for j in range(4):
        a.buf_store4(ACC + 4 * j, 8, OUT, "s68", j * 32)
    a.raw("L_oproj_end:")
    a.raw("    s_endpgm")
    return a


HEADER = """; Kernarg layout (104 bytes, ptrs only, base s[0:1]):
;   0 A_x  8 A_k_cache  16 A_v_cache  24 A_wq  32 A_wo  40 B_x  48 B_k_cache  56 B_v_cache  64 B_wq  72 B_wo
;   80 d_out  88 d_debug  96 d_ws
; Generated by gen/gen2.py (hand-written generator).  Two launches:
;   attn_kernel : per (branch,b,head): Q = x@Wq_h, softmax(QK^T)V -> O (bf16, MFMA-fragment order) in d_ws
;   oproj_kernel: out = O @ Wo (128x64 tiles)
; @launch kernel=attn_kernel grid=(%d,1,1) block=(256,1,1) lds=81920
; @launch kernel=oproj_kernel grid=(256,1,1) block=(256,1,1) lds=98304
.amdgcn_target "amdgcn-amd-amdhsa--gfx950"
.text
.globl attn_kernel
.type attn_kernel,@function
.globl oproj_kernel
.type oproj_kernel,@function
""" % (1024 // NITEMS)

KD = """.amdhsa_kernel {name}
  .amdhsa_next_free_vgpr {vgpr}
  .amdhsa_next_free_sgpr 102
  .amdhsa_accum_offset {acc}
  .amdhsa_group_segment_fixed_size 0
  .amdhsa_kernarg_size 104
  .amdhsa_user_sgpr_count 2
  .amdhsa_user_sgpr_kernarg_segment_ptr 1
  .amdhsa_system_sgpr_workgroup_id_x 1
.end_amdhsa_kernel
"""


def main():
    k1 = gen_k1()
    k2 = gen_k2()
    txt = HEADER + k1.text() + k2.text()
    txt += '.section .rodata,"a"\n.p2align 6\n'
    txt += KD.format(name="attn_kernel", vgpr=256, acc=256)
    txt += ".p2align 6\n"
    txt += KD.format(name="oproj_kernel", vgpr=192, acc=192)
    out = sys.argv[1] if len(sys.argv) > 1 else f"cdna_kernels/{NAME}.s"
    open(out, "w").write(txt)
    print("k1 inst", k1.n_inst, "nops", k1.n_nop, " k2 inst", k2.n_inst, "nops", k2.n_nop, file=sys.stderr)


main()
```

```python
import struct
import sys
import os

sys.path.insert(0, os.path.dirname(os.path.abspath(__file__)))
from asmgen import Asm, R, vr

NAME = "concat_heads__mha_block_cached__gqa_block_cached__near_ridge"


def f32hex(x):
    return "0x%08x" % struct.unpack("<I", struct.pack("<f", x))[0]


SCALE_LOG2E = (128 ** -0.5) * 1.4426950408889634
KV_FLAGS = os.environ.get("KV_FLAGS", " nt")
NO_COMPUTE = os.environ.get("NO_COMPUTE", "") == "1"
NITEMS = int(os.environ.get("NITEMS", "2"))


class TileMgr:
    def __init__(self, a, nslots, order, issue_order, issue_fn, slot_bytes=16384):
        self.a = a
        self.free = list(range(nslots))
        self.order = order
        self.issue_order = list(issue_order)
        self.index = {k: i for i, k in enumerate(order)}
        self.slot = {}
        self.seq = {}
        self.issue_fn = issue_fn
        self.freed = set()
        self.slot_bytes = slot_bytes

    def issue_next(self):
        key = self.issue_order.pop(0)
        s = self.free.pop(0)
        self.slot[key] = s
        self.seq[key] = self.issue_fn(key, s)

    def fill(self):
        while self.free and self.issue_order:
            self.issue_next()

    def ready(self, key, mode):
        a = self.a
        t = self.index[key]
        assert key in self.slot, key
        if self.seq[key] >= 0:
            a.wait_vm_seq(self.seq[key])
        a.barrier()
        lim = t if mode == 'late' else t - 1
        for k in self.order[:max(lim, 0)]:
            if k not in self.freed:
                self.freed.add(k)
                self.free.append(self.slot[k])
        self.fill()

    def base(self, key):
        return self.slot[key] * self.slot_bytes


def run_pipeline(a, tm, items, fillers, ring_base, NR, D):
    n = len(items)
    nxt = 0
    for i in range(n):
        while nxt < n and nxt <= i + D:
            it = items[nxt]
            if it.get('first'):
                if it['mode'] == 'late' and nxt > i:
                    break
                tm.ready(it['tile'], it['mode'])
            if not NO_COMPUTE:
                it['reads'](ring_base + 4 * (nxt % NR))
            nxt += 1
        for f in fillers.get(i, []):
            if NO_COMPUTE and not getattr(f, 'mem', False):
                continue
            f()
        if not NO_COMPUTE:
            items[i]['mfma'](ring_base + 4 * (i % NR))


def spread(ops, start, count):
    res = {}
    per = (len(ops) + count - 1) // count
    for j, op in enumerate(ops):
        res.setdefault(start + j // per, []).append(op)
    return res


def merge(dst, src):
    for k, v in src.items():
        dst.setdefault(k, []).extend(v)


def make_srd(a, d, ptr, nbytes):
    a.salu(f"s_mov_b32 s{d}, s{ptr}")
    a.salu(f"s_and_b32 s{d + 1}, s{ptr + 1}, 0xffff")
    a.salu(f"s_mov_b32 s{d + 2}, {nbytes}")
    a.salu(f"s_mov_b32 s{d + 3}, 0x00020000")


def gen_k1():
    nwg = 1024 // NITEMS
    a = Asm()
    a.raw(".p2align 8")
    a.raw("attn_kernel:")
    a.salu(f"s_cmp_ge_u32 s2, {nwg}")
    a.salu("s_cbranch_scc1 L_attn_end")
    a.salu("s_load_dwordx16 s[16:31], s[0:1], 0")
    a.salu("s_load_dwordx4 s[32:35], s[0:1], 64")
    a.salu("s_load_dwordx2 s[36:37], s[0:1], 96")
    a.salu("s_and_b32 s3, s2, 7")
    a.salu("s_lshr_b32 s4, s2, 3")
    a.salu("s_lshr_b32 s5, s3, 2")
    if os.environ.get("MAPB", "") == "1":
        assert NITEMS == 1
        a.salu("s_and_b32 s6, s3, 3")
        a.salu("s_lshr_b32 s7, s4, 5")
        a.salu("s_and_b32 s8, s4, 31")
        a.salu("s_lshl_b32 s6, s6, 2")
        a.salu("s_add_u32 s7, s7, s6")
    else:
        a.salu("s_and_b32 s6, s3, 3")
        a.salu("s_lshr_b32 s7, s4, 3")
        a.salu("s_and_b32 s8, s4, 7")
        a.salu("s_lshl_b32 s6, s6, 3")
        a.salu("s_add_u32 s8, s8, s6")
    a.emit("v_lshrrev_b32 v1, 6, v0", 'valu', w=[1], r=[0])
    a.emit("v_and_b32 v0, 63, v0", 'valu', w=[0], r=[0])
    a.emit("v_readfirstlane_b32 s60, v1", 'rfl', r=[1], sw=[60])
    a.salu("s_waitcnt lgkmcnt(0)")
    a.salu("s_cmp_eq_u32 s5, 0")
    a.salu("s_cselect_b64 s[10:11], s[16:17], s[26:27]")
    a.salu("s_cselect_b64 s[12:13], s[18:19], s[28:29]")
    a.salu("s_cselect_b64 s[14:15], s[20:21], s[30:31]")
    a.salu("s_cselect_b64 s[38:39], s[22:23], s[32:33]")
    make_srd(a, 40, 10, 2 << 20)
    make_srd(a, 44, 12, 64 << 20)
    make_srd(a, 48, 14, 64 << 20)
    make_srd(a, 52, 38, 4 << 20)
    make_srd(a, 56, 36, 40 << 20)
    XS, KS, VS, WS, OS = 40, 44, 48, 52, 56
    RSH = {1: 9, 2: 8}[NITEMS]
    a.salu(f"s_lshr_b32 s72, s2, {RSH}")
    a.salu("s_cmp_eq_u32 s72, 0")
    a.salu("s_cselect_b64 s[74:75], s[24:25], s[34:35]")
    make_srd(a, 76, 74, 4 << 20)
    WOS = 76
    BSTEP = 16 // NITEMS
    a.salu("s_lshl_b32 s61, s7, 5")
    a.salu("s_add_u32 s61, s61, s8")
    a.salu("s_lshl_b32 s61, s61, 17")
    a.salu("s_lshl_b32 s64, s8, 8")
    a.salu("s_lshl_b32 s65, s60, 12")
    a.salu(f"s_mov_b32 s63, {f32hex(SCALE_LOG2E)}")
    a.salu(f"s_mov_b32 s66, {f32hex(-SCALE_LOG2E)}")
    V = a.valu
    V("v_lshrrev_b32", 8, "4", 0)
    V("v_and_b32", 9, "15", 0)
    V("v_lshlrev_b32", 10, "2", 8)
    V("v_xor_b32", 10, 10, 9)
    V("v_lshlrev_b32", 10, "4", 10)
    V("v_lshlrev_b32", 11, "8", 8)
    V("v_add_u32", 1, 10, 11)
    V("v_add_u32", 1, "s65", 1)
    a.salu("s_lshl_b32 s67, s60, 17")
    V("v_lshlrev_b32", 6, "13", 8)
    V("v_add_u32", 6, 6, 10)
    V("v_add_u32", 6, "s67", 6)
    V("v_xor_b32", 12, 9, 8)
    V("v_lshlrev_b32", 12, "4", 12)
    V("v_add_u32", 12, 12, 11)
    V("v_add_u32", 2, "s65", 12)
    a.salu("s_lshl_b32 s68, s7, 17")
    a.salu("s_lshl_b32 s69, s60, 15")
    a.salu("s_add_u32 s68, s68, s69")
    V("v_and_b32", 13, "31", 0)
    V("v_lshrrev_b32", 14, "5", 0)
    V("v_lshlrev_b32", 7, "10", 13)
    V("v_lshlrev_b32", 15, "4", 14)
    V("v_add_u32", 7, 7, 15)
    V("v_add_u32", 7, "s68", 7)

    def issue(key, slot):
        kind, it, idx = key
        a.salu(f"s_add_u32 m0, s65, {slot * 16384}", m0w=True)
        last = None
        if kind == 'W':
            for i in range(4):
                so = (64 * idx + 4 * i) * 8192 - 1024 * i
                a.salu(f"s_add_u32 s62, s64, {so}")
                last = a.dma4(6, WS, "s62", 1024 * i)
        else:
            a.salu(f"s_add_u32 s62, s61, {idx * 16384 + it * BSTEP * 32 * 131072}")
            for i in range(4):
                if kind == 'K':
                    if i == 0:
                        last = a.dma4(2, KS, "s62", 0, KV_FLAGS)
                    else:
                        V("v_xor_b32", 3, str(64 * i), 2)
                        last = a.dma4(3, KS, "s62", 1024 * i, KV_FLAGS)
                else:
                    last = a.dma4(1, VS, "s62", 1024 * i, KV_FLAGS)
        return last

    order, iorder = [], []
    for it in range(NITEMS):
        order += [('W', it, i) for i in range(8)] + [('K', it, i) for i in range(8)] + [('V', it, i) for i in range(8)]
        iorder += [('W', it, 0), ('W', it, 1), ('W', it, 2), ('K', it, 0), ('K', it, 1)]
        iorder += [('W', it, i) for i in range(3, 8)] + [('K', it, i) for i in range(2, 8)] + [('V', it, i) for i in range(8)]
    tm = TileMgr(a, 5, order, iorder, issue)
    XF = 128

    def xload(it, ks):
        if it == 0:
            a.buf_load4(XF + 4 * ks, 7, XS, "0", ks * 32)
        else:
            a.salu(f"s_mov_b32 s71, {it * BSTEP * 131072}")
            a.buf_load4(XF + 4 * ks, 7, XS, "s71", ks * 32)

    tm.issue_next()
    for ks in range(32):
        xload(0, ks)
    tm.fill()

    def tr_addrs(hmul):
        V("v_lshrrev_b32", 16, "2", 0)
        V("v_and_b32", 16, "3", 16)
        V("v_lshrrev_b32", 17, "4", 0)
        V("v_and_b32", 17, "1", 17)
        V("v_and_b32", 18, "3", 0)
        V("v_lshrrev_b32", 19, "5", 0)
        V("v_lshlrev_b32", 19, str(8 + {4: 2, 8: 3}[hmul]), 19)
        V("v_mul_u32_u24", 20, "0x140", 16)
        V("v_add_u32", 19, 19, 20)
        V("v_lshlrev_b32", 17, "5", 17)
        V("v_add_u32", 19, 19, 17)
        V("v_lshlrev_b32", 18, "3", 18)
        V("v_add_u32", 24, 19, 18)
        for dt in range(1, 4):
            V("v_xor_b32", 24 + dt, str(64 * dt), 24)
        for dt in range(4):
            V("v_add_u32", 28 + dt, "0x8000", 24 + dt)

    def tr_read(d, dt, off):
        if off >= 32768:
            a.ds_read_tr(d, 28 + dt, off - 32768)
        else:
            a.ds_read_tr(d, 24 + dt, off)

    RING, NR, D = 32, 8, 6
    QA = 64
    QF = QA
    SA = 96
    SP = 128
    OA = 64
    T = 8
    PB = 16
    MX0, MX1 = 4, 5
    NEGMC, LS = 4, 5

    for it in range(NITEMS):
        tr_addrs(8)
        items = []
        for ks in range(32):
            j, kq = ks // 4, ks % 4
            for dt in range(4):
                def reads(reg, j=j, kq=kq, dt=dt):
                    base = tm.base(('W', it, j)) + (16 * kq) * 256
                    tr_read(reg, dt, base)
                    tr_read(reg + 2, dt, base + 4 * 256)

                def mf(reg, ks=ks, dt=dt):
                    a.mfma32(QA + 16 * dt, reg, XF + 4 * ks, None if ks == 0 else QA + 16 * dt)
                items.append(dict(tile=('W', it, j), first=(kq == 0 and dt == 0), mode='late', reads=reads, mfma=mf))
        run_pipeline(a, tm, items, {}, RING, NR, D)

        V("v_and_b32", 16, "31", 0)
        V("v_lshlrev_b32", 16, "8", 16)
        V("v_and_b32", 17, "15", 0)
        V("v_lshrrev_b32", 18, "5", 0)
        V("v_xor_b32", 17, 17, 18)
        V("v_lshlrev_b32", 17, "4", 17)
        V("v_add_u32", 8, 16, 17)
        for kk in range(1, 8):
            V("v_xor_b32", 8 + kk, str(32 * kk), 8)
        for kk in range(8):
            V("v_add_u32", 16 + kk, "0x8000", 8 + kk)
        V("v_mov_b32", MX0, "0xff800000")
        V("v_mov_b32", MX1, "0xff800000")
        for kk in range(8):
            for i in range(4):
                a.cvt_pk(QF + 4 * kk + i, QA + 8 * kk + 2 * i, QA + 8 * kk + 2 * i + 1)
        for kk in range(8):
            a.swap32(QF + 4 * kk + 0, QF + 4 * kk + 2)
            a.swap32(QF + 4 * kk + 1, QF + 4 * kk + 3)

        items = []
        fillers = {}

        def post_sub(u):
            ops = []
            sa = SA + 16 * (u % 2)
            for i in range(8):
                mx = MX0 + (i % 2)
                ops.append(lambda i=i, mx=mx: a.emit(
                    f"v_max3_f32 v{mx}, v{sa + 2 * i}, v{sa + 2 * i + 1}, v{mx}", 'valu',
                    w=[mx], r=[sa + 2 * i, sa + 2 * i + 1, mx]))
                ops.append(lambda i=i: a.cvt_pk(SP + 8 * u + i, sa + 2 * i, sa + 2 * i + 1))
            return ops

        for u in range(16):
            j, st = u // 2, u % 2
            for kk in range(8):
                def reads(reg, j=j, st=st, kk=kk):
                    off = tm.base(('K', it, j)) + st * 8192
                    if off >= 32768:
                        a.ds_read_b128(reg, 16 + kk, off - 32768)
                    else:
                        a.ds_read_b128(reg, 8 + kk, off)

                def mf(reg, u=u, kk=kk):
                    sa = SA + 16 * (u % 2)
                    a.mfma32(sa, reg, QF + 4 * kk, None if kk == 0 else sa)
                items.append(dict(tile=('K', it, j), first=(st == 0 and kk == 0),
                                  mode=('late' if j == 0 else 'early'), reads=reads, mfma=mf))
            if u >= 1:
                merge(fillers, spread(post_sub(u - 1), 8 * u + 2, 6))
        run_pipeline(a, tm, items, fillers, RING, NR, D)
        for f in post_sub(15):
            f()
        V("v_max_f32", MX0, MX0, MX1)
        V("v_mov_b32", MX1, MX0)
        a.swap32(MX0, MX1)
        V("v_max_f32", MX0, MX0, MX1)
        a.cvt_pk(MX1, MX0, MX0)
        V("v_lshlrev_b32", MX1, "16", MX1)
        V("v_mul_f32", NEGMC, "s66", MX1)
        V("v_mov_b32", LS, "0")
        tr_addrs(4)

        def p_ops(s):
            ops = []
            sp = SP + 4 * s
            pb = PB + 4 * (s % 2)
            for i in range(4):
                ops.append(lambda i=i: V("v_lshlrev_b32", T + 2 * i, "16", sp + i))
                ops.append(lambda i=i: V("v_and_b32", T + 2 * i + 1, "0xffff0000", sp + i))
            for i in range(8):
                ops.append(lambda i=i: V("v_fma_f32", T + i, T + i, "s63", NEGMC))
            for i in range(8):
                ops.append(lambda i=i: V("v_exp_f32", T + i, T + i, kind='trans'))
            for i in range(4):
                ops.append(lambda i=i: V("v_add_f32", LS, LS, T + 2 * i))
                ops.append(lambda i=i: a.cvt_pk(pb + i, T + 2 * i, T + 2 * i + 1))
                ops.append(lambda i=i: V("v_add_f32", LS, LS, T + 2 * i + 1))
            return ops

        for f in p_ops(0):
            f()
        items = []
        fillers = {}
        for s in range(32):
            j, m = s // 4, s % 4
            for dt in range(4):
                def reads(reg, j=j, m=m, dt=dt):
                    base = tm.base(('V', it, j)) + (16 * m) * 256
                    tr_read(reg, dt, base)
                    tr_read(reg + 2, dt, base + 8 * 256)

                def mf(reg, s=s, dt=dt):
                    a.mfma32(OA + 16 * dt, reg, PB + 4 * (s % 2), None if s == 0 else OA + 16 * dt)
                items.append(dict(tile=('V', it, j), first=(m == 0 and dt == 0),
                                  mode=('late' if j == 0 else 'early'), reads=reads, mfma=mf))
            if s < 31:
                merge(fillers, spread(p_ops(s + 1), 4 * s, 4))
            if it + 1 < NITEMS:
                def xl(s=s):
                    xload(it + 1, s)
                xl.mem = True
                fillers.setdefault(4 * s + 3, []).append(xl)
        run_pipeline(a, tm, items, fillers, RING, NR, D)

        RL = 16
        nfr = 2
        a.salu(f"s_and_b32 s80, s2, {(1 << RSH) - 1}")
        if NITEMS > 1:
            a.salu(f"s_lshl_b32 s80, s80, {NITEMS - 1}")
            a.salu(f"s_add_u32 s80, s80, {it}")
        a.salu("s_lshl_b32 s81, s80, 2")
        a.salu("s_add_u32 s81, s81, s60")
        a.salu("s_and_b32 s82, s81, 255")
        a.salu("s_lshr_b32 s83, s80, 6")
        a.salu("s_lshl_b32 s82, s82, 14")
        a.salu("s_lshl_b32 s83, s83, 7")
        a.salu("s_add_u32 s82, s82, s83")
        a.salu("s_add_u32 s83, s82, 4096")
        V("v_lshrrev_b32", 9, "5", 0)
        V("v_lshlrev_b32", 9, "13", 9)
        V("v_and_b32", 10, "31", 0)
        V("v_lshlrev_b32", 10, "1", 10)
        V("v_add_u32", 9, 9, 10)
        for i in range(nfr):
            for e in range(8):
                reg = 32 + 8 * i + e
                so = "s82" if e < 4 else "s83"
                a.emit(f"buffer_load_ushort v{reg}, v9, s[{WOS}:{WOS + 3}], {so} offen offset:{(e % 4) * 1024 + 64 * i}",
                       'vmem_ld', w=[reg], r=[9])
        V("v_mov_b32", 8, LS)
        a.swap32(LS, 8)
        V("v_add_f32", LS, LS, 8)
        V("v_rcp_f32", LS, LS, kind='trans')
        a.salu("s_lshl_b32 s68, s5, 24")
        a.salu("s_lshl_b32 s69, s7, 20")
        a.salu("s_add_u32 s68, s68, s69")
        a.salu("s_lshl_b32 s69, s60, 18")
        a.salu("s_add_u32 s68, s68, s69")
        a.salu("s_lshl_b32 s69, s8, 13")
        a.salu("s_add_u32 s68, s68, s69")
        if it:
            a.salu(f"s_add_u32 s68, s68, {it * BSTEP << 20}")
        V("v_lshlrev_b32", 8, "4", 0)
        for j in range(8):
            for i in range(8):
                V("v_mul_f32", OA + 8 * j + i, OA + 8 * j + i, LS)
            for i in range(4):
                a.cvt_pk(OA + 4 * j + i, OA + 8 * j + 2 * i, OA + 8 * j + 2 * i + 1)
        for j in range(8):
            a.swap32(OA + 4 * j + 0, OA + 4 * j + 2)
            a.swap32(OA + 4 * j + 1, OA + 4 * j + 3)
        for j in range(8):
            if j == 4:
                a.salu("s_add_u32 s68, s68, 4096")
            a.buf_store4(OA + 4 * j, 8, OS, "s68", (j % 4) * 1024)
        a.salu("s_lshl_b32 s84, s72, 22")
        a.salu("s_lshl_b32 s85, s81, 11")
        a.salu("s_add_u32 s84, s84, s85")
        a.salu(f"s_add_u32 s84, s84, {32 << 20}")
        for i in range(nfr):
            for e in range(4):
                V("v_lshl_or_b32", RL + 4 * i + e, 32 + 8 * i + 2 * e + 1, "16", 32 + 8 * i + 2 * e)
        for i in range(nfr):
            a.buf_store4(RL + 4 * i, 8, OS, "s84", 1024 * i)
    a.raw("L_attn_end:")
    a.raw("    s_endpgm")
    return a


def gen_k2():
    a = Asm()
    a.raw(".p2align 8")
    a.raw("oproj_kernel:")
    a.salu("s_cmp_ge_u32 s2, 256")
    a.salu("s_cbranch_scc1 L_oproj_end")
    a.salu("s_load_dwordx2 s[20:21], s[0:1], 80")
    a.salu("s_load_dwordx2 s[22:23], s[0:1], 96")
    a.salu("s_and_b32 s3, s2, 7")
    a.salu("s_lshr_b32 s4, s2, 3")
    a.salu("s_lshr_b32 s5, s3, 2")
    a.salu("s_and_b32 s6, s3, 3")
    a.salu("s_lshl_b32 s6, s6, 2")
    a.salu("s_lshr_b32 s7, s4, 3")
    a.salu("s_add_u32 s6, s6, s7")
    a.salu("s_and_b32 s7, s4, 7")
    a.emit("v_lshrrev_b32 v1, 6, v0", 'valu', w=[1], r=[0])
    a.emit("v_and_b32 v0, 63, v0", 'valu', w=[0], r=[0])
    a.emit("v_readfirstlane_b32 s60, v1", 'rfl', r=[1], sw=[60])
    a.salu("s_waitcnt lgkmcnt(0)")
    make_srd(a, 44, 22, 40 << 20)
    make_srd(a, 48, 20, 4 << 20)
    OS, OUT = 44, 48
    V = a.valu
    a.salu("s_lshl_b32 s65, s60, 12")
    a.salu("s_lshl_b32 s64, s7, 7")
    a.salu("s_lshl_b32 s71, s5, 22")
    a.salu("s_lshl_b32 s69, s7, 19")
    a.salu("s_add_u32 s71, s71, s69")
    a.salu(f"s_add_u32 s71, s71, {32 << 20}")
    V("v_lshlrev_b32", 2, "4", 0)
    V("v_add_u32", 1, "s65", 2)
    V("v_add_u32", 3, "0xc000", 2)
    a.salu("s_lshl_b32 s68, s5, 24")
    a.salu("s_lshl_b32 s69, s6, 20")
    a.salu("s_add_u32 s68, s68, s69")
    a.salu("s_lshl_b32 s69, s60, 18")
    a.salu("s_add_u32 s68, s68, s69")

    NSLOT = int(os.environ.get("K2_NSLOT", "6"))

    def issue(key, slot):
        idx = key[1]
        a.salu(f"s_add_u32 m0, s65, {slot * 16384}", m0w=True)
        a.salu(f"s_add_u32 s62, s71, {idx * 16384}")
        last = None
        for i in range(4):
            last = a.dma4(1, OS, "s62", 1024 * i)
        return last

    order = [('W', i) for i in range(32)]
    tm = TileMgr(a, NSLOT, order, order, issue)
    OF, NOF, OD = 96, int(os.environ.get("K2_NOF", "24")), int(os.environ.get("K2_OD", "20"))
    ACC = 64
    ld_state = dict(n=0)

    def load_frag():
        n = ld_state['n']
        if n >= 256:
            return
        if n % 4 == 0 and n > 0:
            a.salu("s_add_u32 s68, s68, 4096")
        a.buf_load4(OF + 4 * (n % NOF), 2, OS, "s68", (n % 4) * 1024)
        ld_state['n'] = n + 1
        if NO_COMPUTE:
            a.pend.clear()
            if a.vm_seq - a.vm_done > 40:
                a.wait_vm_seq(a.vm_seq - 40)
    load_frag.mem = True

    tm.issue_next()
    for _ in range(8):
        load_frag()
    tm.fill()
    for _ in range(OD - 8):
        load_frag()

    RING, NR, D = 32, 8, 6
    items = []
    fillers = {}
    for s in range(256):
        j, q = s // 8, s % 8
        for nt in range(2):
            def reads(reg, j=j, q=q, nt=nt):
                off = tm.base(('W', j)) + (2 * q + nt) * 1024
                if off >= 49152:
                    a.ds_read_b128(reg, 3, off - 49152)
                else:
                    a.ds_read_b128(reg, 2, off)

            def mf(reg, s=s, nt=nt):
                a.mfma32(ACC + 16 * nt, reg, OF + 4 * (s % NOF), None if s == 0 else ACC + 16 * nt)
            items.append(dict(tile=('W', j), first=(q == 0 and nt == 0), mode=('late' if j == 0 else 'early'),
                              reads=reads, mfma=mf))
        fillers.setdefault(2 * s + 1, []).append(load_frag)
    run_pipeline(a, tm, items, fillers, RING, NR, D)

    a.salu("s_lshl_b32 s68, s6, 18")
    a.salu("s_lshl_b32 s69, s60, 16")
    a.salu("s_add_u32 s68, s68, s69")
    a.salu("s_lshl_b32 s69, s5, 10")
    a.salu("s_add_u32 s68, s68, s69")
    a.salu("s_add_u32 s68, s68, s64")
    V("v_and_b32", 8, "31", 0)
    V("v_lshlrev_b32", 8, "11", 8)
    V("v_lshrrev_b32", 9, "5", 0)
    V("v_lshlrev_b32", 9, "4", 9)
    V("v_add_u32", 8, 8, 9)
    for j in range(4):
        for i in range(4):
            a.cvt_pk(ACC + 4 * j + i, ACC + 8 * j + 2 * i, ACC + 8 * j + 2 * i + 1)
    for j in range(4):
        a.swap32(ACC + 4 * j + 0, ACC + 4 * j + 2)
        a.swap32(ACC + 4 * j + 1, ACC + 4 * j + 3)
    for j in range(4):
        a.buf_store4(ACC + 4 * j, 8, OUT, "s68", j * 32)
    a.raw("L_oproj_end:")
    a.raw("    s_endpgm")
    return a


HEADER = """; Kernarg layout (104 bytes, ptrs only, base s[0:1]):
;   0 A_x  8 A_k_cache  16 A_v_cache  24 A_wq  32 A_wo  40 B_x  48 B_k_cache  56 B_v_cache  64 B_wq  72 B_wo
;   80 d_out  88 d_debug  96 d_ws
; Generated by gen/gen2.py (hand-written generator).  Two launches:
;   attn_kernel : per (branch,b,head): Q = x@Wq_h, softmax(QK^T)V -> O (bf16, MFMA-fragment order) in d_ws
;   oproj_kernel: out = O @ Wo (128x64 tiles)
; @launch kernel=attn_kernel grid=(%d,1,1) block=(256,1,1) lds=81920
; @launch kernel=oproj_kernel grid=(256,1,1) block=(256,1,1) lds=%d
.amdgcn_target "amdgcn-amd-amdhsa--gfx950"
.text
.globl attn_kernel
.type attn_kernel,@function
.globl oproj_kernel
.type oproj_kernel,@function
""" % (1024 // NITEMS, 16384 * int(os.environ.get("K2_NSLOT", "6")))

KD = """.amdhsa_kernel {name}
  .amdhsa_next_free_vgpr {vgpr}
  .amdhsa_next_free_sgpr 102
  .amdhsa_accum_offset {acc}
  .amdhsa_group_segment_fixed_size 0
  .amdhsa_kernarg_size 104
  .amdhsa_user_sgpr_count 2
  .amdhsa_user_sgpr_kernarg_segment_ptr 1
  .amdhsa_system_sgpr_workgroup_id_x 1
.end_amdhsa_kernel
"""


def main():
    k1 = gen_k1()
    k2 = gen_k2()
    txt = HEADER + k1.text() + k2.text()
    txt += '.section .rodata,"a"\n.p2align 6\n'
    txt += KD.format(name="attn_kernel", vgpr=256, acc=256)
    txt += ".p2align 6\n"
    txt += KD.format(name="oproj_kernel", vgpr=256, acc=256)
    out = sys.argv[1] if len(sys.argv) > 1 else f"cdna_kernels/{NAME}.s"
    open(out, "w").write(txt)
    print("k1 inst", k1.n_inst, "nops", k1.n_nop, " k2 inst", k2.n_inst, "nops", k2.n_nop, file=sys.stderr)


main()
```

```python
import struct
import sys
import os

sys.path.insert(0, os.path.dirname(os.path.abspath(__file__)))
from asmgen import Asm, R, vr

NAME = "concat_heads__mha_block_cached__gqa_block_cached__near_ridge"


def f32hex(x):
    return "0x%08x" % struct.unpack("<I", struct.pack("<f", x))[0]


SCALE_LOG2E = (128 ** -0.5) * 1.4426950408889634
KV_FLAGS = os.environ.get("KV_FLAGS", " nt")
NO_COMPUTE = os.environ.get("NO_COMPUTE", "") == "1"
NITEMS = int(os.environ.get("NITEMS", "1"))
WOOFF, WQOFF, XOFF, WSZ = 32 << 20, 40 << 20, 48 << 20, 52 << 20


class TileMgr:
    def __init__(self, a, nslots, order, issue_order, issue_fn, slot_bytes=16384):
        self.a = a
        self.free = list(range(nslots))
        self.order = order
        self.issue_order = list(issue_order)
        self.index = {k: i for i, k in enumerate(order)}
        self.slot = {}
        self.seq = {}
        self.issue_fn = issue_fn
        self.freed = set()
        self.slot_bytes = slot_bytes

    def issue_next(self):
        key = self.issue_order.pop(0)
        s = self.free.pop(0)
        self.slot[key] = s
        self.seq[key] = self.issue_fn(key, s)

    def fill(self):
        while self.free and self.issue_order:
            self.issue_next()

    def ready(self, key, mode):
        a = self.a
        t = self.index[key]
        assert key in self.slot, key
        if self.seq[key] >= 0:
            a.wait_vm_seq(self.seq[key])
        a.barrier()
        lim = t if mode == 'late' else t - 1
        for k in self.order[:max(lim, 0)]:
            if k not in self.freed:
                self.freed.add(k)
                self.free.append(self.slot[k])
        self.fill()

    def base(self, key):
        return self.slot[key] * self.slot_bytes


def run_pipeline(a, tm, items, fillers, ring_base, NR, D):
    n = len(items)
    nxt = 0
    for i in range(n):
        while nxt < n and nxt <= i + D:
            it = items[nxt]
            if it.get('first'):
                if it['mode'] == 'late' and nxt > i:
                    break
                tm.ready(it['tile'], it['mode'])
            if not NO_COMPUTE:
                it['reads'](ring_base + 4 * (nxt % NR))
            nxt += 1
        for f in fillers.get(i, []):
            if NO_COMPUTE and not getattr(f, 'mem', False):
                continue
            f()
        if not NO_COMPUTE:
            items[i]['mfma'](ring_base + 4 * (i % NR))


def spread(ops, start, count):
    res = {}
    per = (len(ops) + count - 1) // count
    for j, op in enumerate(ops):
        res.setdefault(start + j // per, []).append(op)
    return res


def merge(dst, src):
    for k, v in src.items():
        dst.setdefault(k, []).extend(v)


def make_srd(a, d, ptr, nbytes):
    a.salu(f"s_mov_b32 s{d}, s{ptr}")
    a.salu(f"s_and_b32 s{d + 1}, s{ptr + 1}, 0xffff")
    a.salu(f"s_mov_b32 s{d + 2}, {nbytes}")
    a.salu(f"s_mov_b32 s{d + 3}, 0x00020000")


def gen_k0():
    a = Asm()
    V = a.valu
    a.raw(".p2align 8")
    a.raw("prep_kernel:")
    a.salu("s_cmp_ge_u32 s2, 1024")
    a.salu("s_cbranch_scc1 L_prep_end")
    a.salu("s_load_dwordx16 s[16:31], s[0:1], 0")
    a.salu("s_load_dwordx4 s[32:35], s[0:1], 64")
    a.salu("s_load_dwordx2 s[36:37], s[0:1], 96")
    a.emit("v_lshrrev_b32 v1, 6, v0", 'valu', w=[1], r=[0])
    a.emit("v_and_b32 v0, 63, v0", 'valu', w=[0], r=[0])
    a.emit("v_readfirstlane_b32 s60, v1", 'rfl', r=[1], sw=[60])
    a.salu("s_waitcnt lgkmcnt(0)")
    make_srd(a, 56, 36, WSZ)
    OS = 56
    a.salu("s_lshl_b32 s65, s60, 12")
    V("v_lshlrev_b32", 2, "4", 0)
    a.salu("s_lshl_b32 s3, s2, 2")
    a.salu("s_add_u32 s3, s3, s60")
    a.salu("s_lshr_b32 s4, s3, 11")
    a.salu("s_cmp_eq_u32 s4, 0")
    a.salu("s_cselect_b64 s[10:11], s[16:17], s[26:27]")
    make_srd(a, 40, 10, 2 << 20)
    a.salu("s_lshr_b32 s5, s3, 5")
    a.salu("s_and_b32 s5, s5, 63")
    a.salu("s_lshl_b32 s5, s5, 15")
    a.salu("s_and_b32 s6, s3, 31")
    a.salu("s_lshl_b32 s6, s6, 5")
    a.salu("s_add_u32 s5, s5, s6")
    V("v_and_b32", 3, "31", 0)
    V("v_lshlrev_b32", 3, "10", 3)
    V("v_lshrrev_b32", 4, "5", 0)
    V("v_lshlrev_b32", 4, "4", 4)
    V("v_add_u32", 3, 3, 4)
    a.buf_load4(60, 3, 40, "s5", 0)
    a.salu("s_lshl_b32 s7, s3, 10")
    a.salu(f"s_add_u32 s7, s7, {XOFF}")
    V("v_lshrrev_b32", 16, "2", 0)
    V("v_and_b32", 16, "3", 16)
    V("v_lshrrev_b32", 17, "4", 0)
    V("v_and_b32", 17, "1", 17)
    V("v_lshlrev_b32", 17, "5", 17)
    V("v_and_b32", 18, "3", 0)
    V("v_lshlrev_b32", 18, "3", 18)
    V("v_add_u32", 17, 17, 18)
    V("v_lshrrev_b32", 19, "5", 0)
    a.salu("s_mov_b32 m0, s65", m0w=True)
    a.salu("s_cmp_ge_u32 s2, 512")
    a.salu("s_cbranch_scc1 L_prep_wo")
    st0 = (a.vm_seq, a.vm_done, a.lg_seq, a.lg_done, dict(a.pend))
    a.salu("s_lshr_b32 s4, s2, 8")
    a.salu("s_cmp_eq_u32 s4, 0")
    a.salu("s_cselect_b64 s[10:11], s[22:23], s[32:33]")
    make_srd(a, 44, 10, 4 << 20)
    a.salu("s_lshr_b32 s8, s2, 3")
    a.salu("s_and_b32 s8, s8, 31")
    a.salu("s_and_b32 s9, s2, 7")
    V("v_lshrrev_b32", 8, "4", 0)
    V("v_and_b32", 9, "15", 0)
    V("v_lshlrev_b32", 10, "2", 8)
    V("v_xor_b32", 10, 10, 9)
    V("v_lshlrev_b32", 10, "4", 10)
    V("v_lshlrev_b32", 6, "13", 8)
    V("v_add_u32", 6, 6, 10)
    a.salu("s_lshl_b32 s67, s60, 17")
    V("v_add_u32", 6, "s67", 6)
    a.salu("s_lshl_b32 s64, s9, 19")
    a.salu("s_lshl_b32 s61, s8, 8")
    a.salu("s_add_u32 s64, s64, s61")
    for i in range(4):
        a.salu(f"s_add_u32 s62, s64, {4 * i * 8192 - 1024 * i}")
        a.dma4(6, 44, "s62", 1024 * i)
    V("v_lshlrev_b32", 20, "11", 19)
    V("v_mul_u32_u24", 21, "0x140", 16)
    V("v_add_u32", 20, 20, 21)
    V("v_add_u32", 20, 20, 17)
    V("v_add_u32", 24, "s65", 20)
    for dt in range(1, 4):
        V("v_xor_b32", 24 + dt, str(64 * dt), 24)
    a.salu("s_lshl_b32 s66, s4, 5")
    a.salu("s_add_u32 s66, s66, s8")
    a.salu("s_lshl_b32 s66, s66, 5")
    a.salu("s_lshl_b32 s61, s9, 2")
    a.salu("s_add_u32 s66, s66, s61")
    a.salu("s_add_u32 s66, s66, s60")
    a.salu("s_lshl_b32 s66, s66, 12")
    a.salu(f"s_add_u32 s66, s66, {WQOFF}")
    a.wait_all_vm()
    a.barrier()
    for dt in range(4):
        a.ds_read_tr(32 + 4 * dt, 24 + dt, 0)
        a.ds_read_tr(34 + 4 * dt, 24 + dt, 1024)
    for dt in range(4):
        a.buf_store4(32 + 4 * dt, 2, OS, "s66", 1024 * dt)
    a.buf_store4(60, 2, OS, "s7", 0)
    a.raw("    s_endpgm")
    a.raw("L_prep_wo:")
    a.vm_seq, a.vm_done, a.lg_seq, a.lg_done, a.pend = st0
    a.hist = []
    a.salu("s_sub_u32 s3, s2, 512")
    a.salu("s_lshr_b32 s4, s3, 8")
    a.salu("s_cmp_eq_u32 s4, 0")
    a.salu("s_cselect_b64 s[10:11], s[24:25], s[34:35]")
    make_srd(a, 44, 10, 4 << 20)
    a.salu("s_lshr_b32 s8, s3, 5")
    a.salu("s_and_b32 s8, s8, 7")
    a.salu("s_and_b32 s9, s3, 31")
    V("v_lshrrev_b32", 8, "3", 0)
    V("v_lshlrev_b32", 8, "10", 8)
    V("v_and_b32", 9, "7", 0)
    V("v_lshrrev_b32", 10, "4", 0)
    V("v_and_b32", 10, "1", 10)
    V("v_lshlrev_b32", 10, "2", 10)
    V("v_xor_b32", 9, 9, 10)
    V("v_lshlrev_b32", 9, "4", 9)
    V("v_add_u32", 6, 8, 9)
    a.salu("s_lshl_b32 s67, s60, 15")
    V("v_add_u32", 6, "s67", 6)
    a.salu("s_lshl_b32 s64, s9, 17")
    a.salu("s_lshl_b32 s61, s8, 7")
    a.salu("s_add_u32 s64, s64, s61")
    for i in range(4):
        a.salu(f"s_add_u32 s62, s64, {8192 * i - 1024 * i}")
        a.dma4(6, 44, "s62", 1024 * i)
    V("v_lshlrev_b32", 20, "10", 19)
    V("v_lshlrev_b32", 21, "7", 16)
    V("v_add_u32", 20, 20, 21)
    V("v_lshrrev_b32", 21, "1", 16)
    V("v_lshlrev_b32", 21, "6", 21)
    V("v_add_u32", 20, 20, 21)
    V("v_add_u32", 20, 20, 17)
    V("v_add_u32", 24, "s65", 20)
    V("v_xor_b32", 25, "64", 24)
    a.salu("s_lshl_b32 s66, s4, 22")
    a.salu("s_lshl_b32 s61, s8, 19")
    a.salu("s_add_u32 s66, s66, s61")
    a.salu("s_lshl_b32 s61, s9, 14")
    a.salu("s_add_u32 s66, s66, s61")
    a.salu("s_add_u32 s66, s66, s65")
    a.salu(f"s_add_u32 s66, s66, {WOOFF}")
    a.wait_all_vm()
    a.barrier()
    for q in range(2):
        for nt in range(2):
            a.ds_read_tr(32 + 8 * q + 4 * nt, 24 + nt, q * 2048)
            a.ds_read_tr(34 + 8 * q + 4 * nt, 24 + nt, q * 2048 + 512)
    for q in range(2):
        for nt in range(2):
            a.buf_store4(32 + 8 * q + 4 * nt, 2, OS, "s66", (2 * q + nt) * 1024)
    a.buf_store4(60, 2, OS, "s7", 0)
    a.raw("L_prep_end:")
    a.raw("    s_endpgm")
    return a


def gen_k1():
    nwg = 1024 // NITEMS
    a = Asm()
    a.raw(".p2align 8")
    a.raw("attn_kernel:")
    a.salu(f"s_cmp_ge_u32 s2, {nwg}")
    a.salu("s_cbranch_scc1 L_attn_end")
    a.salu("s_load_dwordx16 s[16:31], s[0:1], 0")
    a.salu("s_load_dwordx4 s[32:35], s[0:1], 64")
    a.salu("s_load_dwordx2 s[36:37], s[0:1], 96")
    a.salu("s_and_b32 s3, s2, 7")
    a.salu("s_lshr_b32 s4, s2, 3")
    a.salu("s_lshr_b32 s5, s3, 2")
    if os.environ.get("MAPB", "") == "1":
        assert NITEMS == 1
        a.salu("s_and_b32 s6, s3, 3")
        a.salu("s_lshr_b32 s7, s4, 5")
        a.salu("s_and_b32 s8, s4, 31")
        a.salu("s_lshl_b32 s6, s6, 2")
        a.salu("s_add_u32 s7, s7, s6")
    else:
        a.salu("s_and_b32 s6, s3, 3")
        a.salu("s_lshr_b32 s7, s4, 3")
        a.salu("s_and_b32 s8, s4, 7")
        a.salu("s_lshl_b32 s6, s6, 3")
        a.salu("s_add_u32 s8, s8, s6")
    a.emit("v_lshrrev_b32 v1, 6, v0", 'valu', w=[1], r=[0])
    a.emit("v_and_b32 v0, 63, v0", 'valu', w=[0], r=[0])
    a.emit("v_readfirstlane_b32 s60, v1", 'rfl', r=[1], sw=[60])
    a.salu("s_waitcnt lgkmcnt(0)")
    a.salu("s_cmp_eq_u32 s5, 0")
    a.salu("s_cselect_b64 s[10:11], s[16:17], s[26:27]")
    a.salu("s_cselect_b64 s[12:13], s[18:19], s[28:29]")
    a.salu("s_cselect_b64 s[14:15], s[20:21], s[30:31]")
    a.salu("s_cselect_b64 s[38:39], s[22:23], s[32:33]")
    make_srd(a, 40, 10, 2 << 20)
    make_srd(a, 44, 12, 64 << 20)
    make_srd(a, 48, 14, 64 << 20)
    make_srd(a, 52, 38, 4 << 20)
    make_srd(a, 56, 36, WSZ)
    XS, KS, VS, WS, OS = 40, 44, 48, 52, 56
    BSTEP = 16 // NITEMS
    a.salu("s_lshl_b32 s61, s7, 5")
    a.salu("s_add_u32 s61, s61, s8")
    a.salu("s_lshl_b32 s61, s61, 17")
    a.salu("s_lshl_b32 s64, s8, 8")
    a.salu("s_lshl_b32 s65, s60, 12")
    a.salu(f"s_mov_b32 s63, {f32hex(SCALE_LOG2E)}")
    a.salu(f"s_mov_b32 s66, {f32hex(-SCALE_LOG2E)}")
    V = a.valu
    V("v_lshrrev_b32", 8, "4", 0)
    V("v_and_b32", 9, "15", 0)
    V("v_lshlrev_b32", 10, "2", 8)
    V("v_xor_b32", 10, 10, 9)
    V("v_lshlrev_b32", 10, "4", 10)
    V("v_lshlrev_b32", 11, "8", 8)
    V("v_add_u32", 1, 10, 11)
    V("v_add_u32", 1, "s65", 1)
    V("v_lshlrev_b32", 6, "4", 0)
    V("v_add_u32", 6, "s65", 6)
    a.salu("s_lshl_b32 s64, s5, 5")
    a.salu("s_add_u32 s64, s64, s8")
    a.salu("s_lshl_b32 s64, s64, 17")
    a.salu(f"s_add_u32 s64, s64, {WQOFF}")
    V("v_xor_b32", 12, 9, 8)
    V("v_lshlrev_b32", 12, "4", 12)
    V("v_add_u32", 12, 12, 11)
    V("v_add_u32", 2, "s65", 12)
    a.salu("s_lshl_b32 s73, s5, 4")
    a.salu("s_add_u32 s73, s73, s7")
    a.salu("s_lshl_b32 s73, s73, 2")
    a.salu("s_add_u32 s73, s73, s60")
    a.salu("s_lshl_b32 s73, s73, 15")
    a.salu(f"s_add_u32 s73, s73, {XOFF}")
    V("v_lshlrev_b32", 7, "4", 0)

    def issue(key, slot):
        kind, it, idx = key
        a.salu(f"s_add_u32 m0, s65, {slot * 16384}", m0w=True)
        last = None
        if kind == 'W':
            a.salu(f"s_add_u32 s62, s64, {idx * 16384}")
            for i in range(4):
                last = a.dma4(6, OS, "s62", 1024 * i)
        else:
            a.salu(f"s_add_u32 s62, s61, {idx * 16384 + it * BSTEP * 32 * 131072}")
            for i in range(4):
                if kind == 'K':
                    if i == 0:
                        last = a.dma4(2, KS, "s62", 0, KV_FLAGS)
                    else:
                        V("v_xor_b32", 3, str(64 * i), 2)
                        last = a.dma4(3, KS, "s62", 1024 * i, KV_FLAGS)
                else:
                    last = a.dma4(1, VS, "s62", 1024 * i, KV_FLAGS)
        return last

    order, iorder = [], []
    for it in range(NITEMS):
        order += [('W', it, i) for i in range(8)] + [('K', it, i) for i in range(8)] + [('V', it, i) for i in range(8)]
        iorder += [('W', it, 0), ('W', it, 1), ('W', it, 2), ('K', it, 0), ('K', it, 1)]
        iorder += [('W', it, i) for i in range(3, 8)] + [('K', it, i) for i in range(2, 8)] + [('V', it, i) for i in range(8)]
    tm = TileMgr(a, 5, order, iorder, issue)
    XF = 128

    def xload(it, ks):
        if ks % 4 == 0 or it > 0:
            a.salu(f"s_add_u32 s71, s73, {it * BSTEP * 4 * 32768 + (ks // 4) * 4096}")
        a.buf_load4(XF + 4 * ks, 7, OS, "s71", (ks % 4) * 1024)

    tm.issue_next()
    for ks in range(32):
        xload(0, ks)
    tm.fill()

    def tr_addrs(hmul):
        V("v_lshrrev_b32", 16, "2", 0)
        V("v_and_b32", 16, "3", 16)
        V("v_lshrrev_b32", 17, "4", 0)
        V("v_and_b32", 17, "1", 17)
        V("v_and_b32", 18, "3", 0)
        V("v_lshrrev_b32", 19, "5", 0)
        V("v_lshlrev_b32", 19, str(8 + {4: 2, 8: 3}[hmul]), 19)
        V("v_mul_u32_u24", 20, "0x140", 16)
        V("v_add_u32", 19, 19, 20)
        V("v_lshlrev_b32", 17, "5", 17)
        V("v_add_u32", 19, 19, 17)
        V("v_lshlrev_b32", 18, "3", 18)
        V("v_add_u32", 24, 19, 18)
        for dt in range(1, 4):
            V("v_xor_b32", 24 + dt, str(64 * dt), 24)
        for dt in range(4):
            V("v_add_u32", 28 + dt, "0x8000", 24 + dt)

    def tr_read(d, dt, off):
        if off >= 32768:
            a.ds_read_tr(d, 28 + dt, off - 32768)
        else:
            a.ds_read_tr(d, 24 + dt, off)

    RING, NR, D = 32, 8, 6
    QA = 64
    QF = QA
    SA = 96
    SP = 128
    OA = 64
    T = 8
    PB = 16
    MX0, MX1 = 4, 5
    NEGMC, LS = 4, 5

    for it in range(NITEMS):
        V("v_lshlrev_b32", 24, "4", 0)
        V("v_add_u32", 28, "0x8000", 24)
        items = []
        for ks in range(32):
            j, kq = ks // 4, ks % 4
            for dt in range(4):
                def reads(reg, j=j, kq=kq, dt=dt):
                    off = tm.base(('W', it, j)) + (4 * kq + dt) * 1024
                    if off >= 32768:
                        a.ds_read_b128(reg, 28, off - 32768)
                    else:
                        a.ds_read_b128(reg, 24, off)

                def mf(reg, ks=ks, dt=dt):
                    a.mfma32(QA + 16 * dt, reg, XF + 4 * ks, None if ks == 0 else QA + 16 * dt)
                items.append(dict(tile=('W', it, j), first=(kq == 0 and dt == 0), mode='late', reads=reads, mfma=mf))
        run_pipeline(a, tm, items, {}, RING, NR, D)

        V("v_and_b32", 16, "31", 0)
        V("v_lshlrev_b32", 16, "8", 16)
        V("v_and_b32", 17, "15", 0)
        V("v_lshrrev_b32", 18, "5", 0)
        V("v_xor_b32", 17, 17, 18)
        V("v_lshlrev_b32", 17, "4", 17)
        V("v_add_u32", 8, 16, 17)
        for kk in range(1, 8):
            V("v_xor_b32", 8 + kk, str(32 * kk), 8)
        for kk in range(8):
            V("v_add_u32", 16 + kk, "0x8000", 8 + kk)
        V("v_mov_b32", MX0, "0xff800000")
        V("v_mov_b32", MX1, "0xff800000")
        for kk in range(8):
            for i in range(4):
                a.cvt_pk(QF + 4 * kk + i, QA + 8 * kk + 2 * i, QA + 8 * kk + 2 * i + 1)
        for kk in range(8):
            a.swap32(QF + 4 * kk + 0, QF + 4 * kk + 2)
            a.swap32(QF + 4 * kk + 1, QF + 4 * kk + 3)

        items = []
        fillers = {}

        def post_sub(u):
            ops = []
            sa = SA + 16 * (u % 2)
            for i in range(8):
                mx = MX0 + (i % 2)
                ops.append(lambda i=i, mx=mx: a.emit(
                    f"v_max3_f32 v{mx}, v{sa + 2 * i}, v{sa + 2 * i + 1}, v{mx}", 'valu',
                    w=[mx], r=[sa + 2 * i, sa + 2 * i + 1, mx]))
                ops.append(lambda i=i: a.cvt_pk(SP + 8 * u + i, sa + 2 * i, sa + 2 * i + 1))
            return ops

        for u in range(16):
            j, st = u // 2, u % 2
            for kk in range(8):
                def reads(reg, j=j, st=st, kk=kk):
                    off = tm.base(('K', it, j)) + st * 8192
                    if off >= 32768:
                        a.ds_read_b128(reg, 16 + kk, off - 32768)
                    else:
                        a.ds_read_b128(reg, 8 + kk, off)

                def mf(reg, u=u, kk=kk):
                    sa = SA + 16 * (u % 2)
                    a.mfma32(sa, reg, QF + 4 * kk, None if kk == 0 else sa)
                items.append(dict(tile=('K', it, j), first=(st == 0 and kk == 0),
                                  mode=('late' if j == 0 else 'early'), reads=reads, mfma=mf))
            if u >= 1:
                merge(fillers, spread(post_sub(u - 1), 8 * u + 2, 6))
        run_pipeline(a, tm, items, fillers, RING, NR, D)
        for f in post_sub(15):
            f()
        V("v_max_f32", MX0, MX0, MX1)
        V("v_mov_b32", MX1, MX0)
        a.swap32(MX0, MX1)
        V("v_max_f32", MX0, MX0, MX1)
        a.cvt_pk(MX1, MX0, MX0)
        V("v_lshlrev_b32", MX1, "16", MX1)
        V("v_mul_f32", NEGMC, "s66", MX1)
        V("v_mov_b32", LS, "0")
        tr_addrs(4)

        def p_ops(s):
            ops = []
            sp = SP + 4 * s
            pb = PB + 4 * (s % 2)
            for i in range(4):
                ops.append(lambda i=i: V("v_lshlrev_b32", T + 2 * i, "16", sp + i))
                ops.append(lambda i=i: V("v_and_b32", T + 2 * i + 1, "0xffff0000", sp + i))
            for i in range(8):
                ops.append(lambda i=i: V("v_fma_f32", T + i, T + i, "s63", NEGMC))
            for i in range(8):
                ops.append(lambda i=i: V("v_exp_f32", T + i, T + i, kind='trans'))
            for i in range(4):
                ops.append(lambda i=i: V("v_add_f32", LS, LS, T + 2 * i))
                ops.append(lambda i=i: a.cvt_pk(pb + i, T + 2 * i, T + 2 * i + 1))
                ops.append(lambda i=i: V("v_add_f32", LS, LS, T + 2 * i + 1))
            return ops

        for f in p_ops(0):
            f()
        items = []
        fillers = {}
        for s in range(32):
            j, m = s // 4, s % 4
            for dt in range(4):
                def reads(reg, j=j, m=m, dt=dt):
                    base = tm.base(('V', it, j)) + (16 * m) * 256
                    tr_read(reg, dt, base)
                    tr_read(reg + 2, dt, base + 8 * 256)

                def mf(reg, s=s, dt=dt):
                    a.mfma32(OA + 16 * dt, reg, PB + 4 * (s % 2), None if s == 0 else OA + 16 * dt)
                items.append(dict(tile=('V', it, j), first=(m == 0 and dt == 0),
                                  mode=('late' if j == 0 else 'early'), reads=reads, mfma=mf))
            if s < 31:
                merge(fillers, spread(p_ops(s + 1), 4 * s, 4))
            if it + 1 < NITEMS:
                def xl(s=s):
                    xload(it + 1, s)
                xl.mem = True
                fillers.setdefault(4 * s + 3, []).append(xl)
        run_pipeline(a, tm, items, fillers, RING, NR, D)

        V("v_mov_b32", 8, LS)
        a.swap32(LS, 8)
        V("v_add_f32", LS, LS, 8)
        V("v_rcp_f32", LS, LS, kind='trans')
        a.salu("s_lshl_b32 s68, s5, 24")
        a.salu("s_lshl_b32 s69, s7, 20")
        a.salu("s_add_u32 s68, s68, s69")
        a.salu("s_lshl_b32 s69, s60, 18")
        a.salu("s_add_u32 s68, s68, s69")
        a.salu("s_lshl_b32 s69, s8, 13")
        a.salu("s_add_u32 s68, s68, s69")
        if it:
            a.salu(f"s_add_u32 s68, s68, {it * BSTEP << 20}")
        V("v_lshlrev_b32", 8, "4", 0)
        for j in range(8):
            for i in range(8):
                V("v_mul_f32", OA + 8 * j + i, OA + 8 * j + i, LS)
            for i in range(4):
                a.cvt_pk(OA + 4 * j + i, OA + 8 * j + 2 * i, OA + 8 * j + 2 * i + 1)
        for j in range(8):
            a.swap32(OA + 4 * j + 0, OA + 4 * j + 2)
            a.swap32(OA + 4 * j + 1, OA + 4 * j + 3)
        for j in range(8):
            if j == 4:
                a.salu("s_add_u32 s68, s68, 4096")
            a.buf_store4(OA + 4 * j, 8, OS, "s68", (j % 4) * 1024)
    a.raw("L_attn_end:")
    a.raw("    s_endpgm")
    return a


def gen_k2():
    a = Asm()
    a.raw(".p2align 8")
    a.raw("oproj_kernel:")
    a.salu("s_cmp_ge_u32 s2, 256")
    a.salu("s_cbranch_scc1 L_oproj_end")
    a.salu("s_load_dwordx2 s[20:21], s[0:1], 80")
    a.salu("s_load_dwordx2 s[22:23], s[0:1], 96")
    a.salu("s_and_b32 s3, s2, 7")
    a.salu("s_lshr_b32 s4, s2, 3")
    a.salu("s_lshr_b32 s5, s3, 2")
    a.salu("s_and_b32 s6, s3, 3")
    a.salu("s_lshl_b32 s6, s6, 2")
    a.salu("s_lshr_b32 s7, s4, 3")
    a.salu("s_add_u32 s6, s6, s7")
    a.salu("s_and_b32 s7, s4, 7")
    a.emit("v_lshrrev_b32 v1, 6, v0", 'valu', w=[1], r=[0])
    a.emit("v_and_b32 v0, 63, v0", 'valu', w=[0], r=[0])
    a.emit("v_readfirstlane_b32 s60, v1", 'rfl', r=[1], sw=[60])
    a.salu("s_waitcnt lgkmcnt(0)")
    make_srd(a, 44, 22, WSZ)
    make_srd(a, 48, 20, 4 << 20)
    OS, OUT = 44, 48
    V = a.valu
    a.salu("s_lshl_b32 s65, s60, 12")
    a.salu("s_lshl_b32 s64, s7, 7")
    a.salu("s_lshl_b32 s71, s5, 22")
    a.salu("s_lshl_b32 s69, s7, 19")
    a.salu("s_add_u32 s71, s71, s69")
    a.salu(f"s_add_u32 s71, s71, {32 << 20}")
    V("v_lshlrev_b32", 2, "4", 0)
    V("v_add_u32", 1, "s65", 2)
    V("v_add_u32", 3, "0xc000", 2)
    a.salu("s_lshl_b32 s68, s5, 24")
    a.salu("s_lshl_b32 s69, s6, 20")
    a.salu("s_add_u32 s68, s68, s69")
    a.salu("s_lshl_b32 s69, s60, 18")
    a.salu("s_add_u32 s68, s68, s69")

    NSLOT = int(os.environ.get("K2_NSLOT", "6"))

    def issue(key, slot):
        idx = key[1]
        a.salu(f"s_add_u32 m0, s65, {slot * 16384}", m0w=True)
        a.salu(f"s_add_u32 s62, s71, {idx * 16384}")
        last = None
        for i in range(4):
            last = a.dma4(1, OS, "s62", 1024 * i)
        return last

    order = [('W', i) for i in range(32)]
    tm = TileMgr(a, NSLOT, order, order, issue)
    OF, NOF, OD = 96, int(os.environ.get("K2_NOF", "24")), int(os.environ.get("K2_OD", "20"))
    ACC = 64
    ld_state = dict(n=0)

    def load_frag():
        n = ld_state['n']
        if n >= 256:
            return
        if n % 4 == 0 and n > 0:
            a.salu("s_add_u32 s68, s68, 4096")
        a.buf_load4(OF + 4 * (n % NOF), 2, OS, "s68", (n % 4) * 1024)
        ld_state['n'] = n + 1
        if NO_COMPUTE:
            a.pend.clear()
            if a.vm_seq - a.vm_done > 40:
                a.wait_vm_seq(a.vm_seq - 40)
    load_frag.mem = True

    tm.issue_next()
    for _ in range(8):
        load_frag()
    tm.fill()
    for _ in range(OD - 8):
        load_frag()

    RING, NR, D = 32, 8, 6
    items = []
    fillers = {}
    for s in range(256):
        j, q = s // 8, s % 8
        for nt in range(2):
            def reads(reg, j=j, q=q, nt=nt):
                off = tm.base(('W', j)) + (2 * q + nt) * 1024
                if off >= 49152:
                    a.ds_read_b128(reg, 3, off - 49152)
                else:
                    a.ds_read_b128(reg, 2, off)

            def mf(reg, s=s, nt=nt):
                a.mfma32(ACC + 16 * nt, reg, OF + 4 * (s % NOF), None if s == 0 else ACC + 16 * nt)
            items.append(dict(tile=('W', j), first=(q == 0 and nt == 0), mode=('late' if j == 0 else 'early'),
                              reads=reads, mfma=mf))
        fillers.setdefault(2 * s + 1, []).append(load_frag)
    run_pipeline(a, tm, items, fillers, RING, NR, D)

    a.salu("s_lshl_b32 s68, s6, 18")
    a.salu("s_lshl_b32 s69, s60, 16")
    a.salu("s_add_u32 s68, s68, s69")
    a.salu("s_lshl_b32 s69, s5, 10")
    a.salu("s_add_u32 s68, s68, s69")
    a.salu("s_add_u32 s68, s68, s64")
    V("v_and_b32", 8, "31", 0)
    V("v_lshlrev_b32", 8, "11", 8)
    V("v_lshrrev_b32", 9, "5", 0)
    V("v_lshlrev_b32", 9, "4", 9)
    V("v_add_u32", 8, 8, 9)
    for j in range(4):
        for i in range(4):
            a.cvt_pk(ACC + 4 * j + i, ACC + 8 * j + 2 * i, ACC + 8 * j + 2 * i + 1)
    for j in range(4):
        a.swap32(ACC + 4 * j + 0, ACC + 4 * j + 2)
        a.swap32(ACC + 4 * j + 1, ACC + 4 * j + 3)
    for j in range(4):
        a.buf_store4(ACC + 4 * j, 8, OUT, "s68", j * 32)
    a.raw("L_oproj_end:")
    a.raw("    s_endpgm")
    return a


HEADER = """; Kernarg layout (104 bytes, ptrs only, base s[0:1]):
;   0 A_x  8 A_k_cache  16 A_v_cache  24 A_wq  32 A_wo  40 B_x  48 B_k_cache  56 B_v_cache  64 B_wq  72 B_wo
;   80 d_out  88 d_debug  96 d_ws
; Generated by gen/gen3.py (hand-written generator).  Three launches:
;   prep_kernel : re-layout wq/wo/x into MFMA fragment order in d_ws
;   attn_kernel : per (branch,b,head): Q = x@Wq_h, softmax(QK^T)V -> O (bf16, MFMA-fragment order) in d_ws
;   oproj_kernel: out = O @ Wo (128x64 tiles)
; @launch kernel=prep_kernel grid=(1024,1,1) block=(256,1,1) lds=16384
; @launch kernel=attn_kernel grid=(%d,1,1) block=(256,1,1) lds=81920
; @launch kernel=oproj_kernel grid=(256,1,1) block=(256,1,1) lds=%d
.amdgcn_target "amdgcn-amd-amdhsa--gfx950"
.text
.globl prep_kernel
.type prep_kernel,@function
.globl attn_kernel
.type attn_kernel,@function
.globl oproj_kernel
.type oproj_kernel,@function
""" % (1024 // NITEMS, 16384 * int(os.environ.get("K2_NSLOT", "6")))

KD = """.amdhsa_kernel {name}
  .amdhsa_next_free_vgpr {vgpr}
  .amdhsa_next_free_sgpr 102
  .amdhsa_accum_offset {acc}
  .amdhsa_group_segment_fixed_size 0
  .amdhsa_kernarg_size 104
  .amdhsa_user_sgpr_count 2
  .amdhsa_user_sgpr_kernarg_segment_ptr 1
  .amdhsa_system_sgpr_workgroup_id_x 1
.end_amdhsa_kernel
"""


def main():
    k0 = gen_k0()
    k1 = gen_k1()
    k2 = gen_k2()
    txt = HEADER + k0.text() + k1.text() + k2.text()
    txt += '.section .rodata,"a"\n.p2align 6\n'
    txt += KD.format(name="prep_kernel", vgpr=64, acc=64)
    txt += ".p2align 6\n"
    txt += KD.format(name="attn_kernel", vgpr=256, acc=256)
    txt += ".p2align 6\n"
    txt += KD.format(name="oproj_kernel", vgpr=256, acc=256)
    out = sys.argv[1] if len(sys.argv) > 1 else f"cdna_kernels/{NAME}.s"
    open(out, "w").write(txt)
    print("k1 inst", k1.n_inst, "nops", k1.n_nop, " k2 inst", k2.n_inst, "nops", k2.n_nop, file=sys.stderr)


main()
```

```python
import struct
import sys
import os

sys.path.insert(0, os.path.dirname(os.path.abspath(__file__)))
from asmgen import Asm, R, vr

NAME = "concat_heads__mha_block_cached__gqa_block_cached__near_ridge"


def f32hex(x):
    return "0x%08x" % struct.unpack("<I", struct.pack("<f", x))[0]


SCALE_LOG2E = (128 ** -0.5) * 1.4426950408889634
KV_FLAGS = os.environ.get("KV_FLAGS", " nt")
NO_COMPUTE = os.environ.get("NO_COMPUTE", "") == "1"
NITEMS = int(os.environ.get("NITEMS", "1"))
WOOFF, WQOFF, XOFF, WSZ = 32 << 20, 40 << 20, 48 << 20, 52 << 20
WO_IN_K1 = os.environ.get("WO_IN_K1", "1") == "1"


class TileMgr:
    def __init__(self, a, nslots, order, issue_order, issue_fn, slot_bytes=16384):
        self.a = a
        self.free = list(range(nslots))
        self.order = order
        self.issue_order = list(issue_order)
        self.index = {k: i for i, k in enumerate(order)}
        self.slot = {}
        self.seq = {}
        self.issue_fn = issue_fn
        self.freed = set()
        self.slot_bytes = slot_bytes

    def issue_next(self):
        key = self.issue_order.pop(0)
        s = self.free.pop(0)
        self.slot[key] = s
        self.seq[key] = self.issue_fn(key, s)

    def fill(self):
        while self.free and self.issue_order:
            self.issue_next()

    def ready(self, key, mode):
        a = self.a
        t = self.index[key]
        assert key in self.slot, key
        if self.seq[key] >= 0:
            a.wait_vm_seq(self.seq[key])
        a.barrier()
        lim = t if mode == 'late' else t - 1
        for k in self.order[:max(lim, 0)]:
            if k not in self.freed:
                self.freed.add(k)
                self.free.append(self.slot[k])
        self.fill()

    def base(self, key):
        return self.slot[key] * self.slot_bytes


def run_pipeline(a, tm, items, fillers, ring_base, NR, D):
    n = len(items)
    nxt = 0
    for i in range(n):
        while nxt < n and nxt <= i + D:
            it = items[nxt]
            if it.get('first'):
                if it['mode'] == 'late' and nxt > i:
                    break
                tm.ready(it['tile'], it['mode'])
            if not NO_COMPUTE:
                it['reads'](ring_base + 4 * (nxt % NR))
            nxt += 1
        for f in fillers.get(i, []):
            if NO_COMPUTE and not getattr(f, 'mem', False):
                continue
            f()
        if not NO_COMPUTE:
            items[i]['mfma'](ring_base + 4 * (i % NR))


def spread(ops, start, count):
    res = {}
    per = (len(ops) + count - 1) // count
    for j, op in enumerate(ops):
        res.setdefault(start + j // per, []).append(op)
    return res


def merge(dst, src):
    for k, v in src.items():
        dst.setdefault(k, []).extend(v)


def make_srd(a, d, ptr, nbytes):
    a.salu(f"s_mov_b32 s{d}, s{ptr}")
    a.salu(f"s_and_b32 s{d + 1}, s{ptr + 1}, 0xffff")
    a.salu(f"s_mov_b32 s{d + 2}, {nbytes}")
    a.salu(f"s_mov_b32 s{d + 3}, 0x00020000")


def gen_k0():
    a = Asm()
    V = a.valu
    a.raw(".p2align 8")
    a.raw("prep_kernel:")
    a.salu("s_cmp_ge_u32 s2, 1024")
    a.salu("s_cbranch_scc1 L_prep_end")
    a.salu("s_load_dwordx16 s[16:31], s[0:1], 0")
    a.salu("s_load_dwordx4 s[32:35], s[0:1], 64")
    a.salu("s_load_dwordx2 s[36:37], s[0:1], 96")
    a.emit("v_lshrrev_b32 v1, 6, v0", 'valu', w=[1], r=[0])
    a.emit("v_and_b32 v0, 63, v0", 'valu', w=[0], r=[0])
    a.emit("v_readfirstlane_b32 s60, v1", 'rfl', r=[1], sw=[60])
    a.salu("s_waitcnt lgkmcnt(0)")
    make_srd(a, 56, 36, WSZ)
    OS = 56
    a.salu("s_lshl_b32 s65, s60, 12")
    V("v_lshlrev_b32", 2, "4", 0)
    a.salu("s_lshl_b32 s3, s2, 2")
    a.salu("s_add_u32 s3, s3, s60")
    a.salu("s_lshr_b32 s4, s3, 11")
    a.salu("s_cmp_eq_u32 s4, 0")
    a.salu("s_cselect_b64 s[10:11], s[16:17], s[26:27]")
    make_srd(a, 40, 10, 2 << 20)
    a.salu("s_lshr_b32 s5, s3, 5")
    a.salu("s_and_b32 s5, s5, 63")
    a.salu("s_lshl_b32 s5, s5, 15")
    a.salu("s_and_b32 s6, s3, 31")
    a.salu("s_lshl_b32 s6, s6, 5")
    a.salu("s_add_u32 s5, s5, s6")
    V("v_and_b32", 3, "31", 0)
    V("v_lshlrev_b32", 3, "10", 3)
    V("v_lshrrev_b32", 4, "5", 0)
    V("v_lshlrev_b32", 4, "4", 4)
    V("v_add_u32", 3, 3, 4)
    a.buf_load4(60, 3, 40, "s5", 0)
    a.salu("s_lshl_b32 s7, s3, 10")
    a.salu(f"s_add_u32 s7, s7, {XOFF}")
    V("v_lshrrev_b32", 16, "2", 0)
    V("v_and_b32", 16, "3", 16)
    V("v_lshrrev_b32", 17, "4", 0)
    V("v_and_b32", 17, "1", 17)
    V("v_lshlrev_b32", 17, "5", 17)
    V("v_and_b32", 18, "3", 0)
    V("v_lshlrev_b32", 18, "3", 18)
    V("v_add_u32", 17, 17, 18)
    V("v_lshrrev_b32", 19, "5", 0)
    a.salu("s_mov_b32 m0, s65", m0w=True)
    a.salu("s_cmp_ge_u32 s2, 512")
    a.salu("s_cbranch_scc1 L_prep_wo")
    st0 = (a.vm_seq, a.vm_done, a.lg_seq, a.lg_done, dict(a.pend))
    a.salu("s_lshr_b32 s4, s2, 8")
    a.salu("s_cmp_eq_u32 s4, 0")
    a.salu("s_cselect_b64 s[10:11], s[22:23], s[32:33]")
    make_srd(a, 44, 10, 4 << 20)
    a.salu("s_lshr_b32 s8, s2, 3")
    a.salu("s_and_b32 s8, s8, 31")
    a.salu("s_and_b32 s9, s2, 7")
    V("v_lshrrev_b32", 8, "4", 0)
    V("v_and_b32", 9, "15", 0)
    V("v_lshlrev_b32", 10, "2", 8)
    V("v_xor_b32", 10, 10, 9)
    V("v_lshlrev_b32", 10, "4", 10)
    V("v_lshlrev_b32", 6, "13", 8)
    V("v_add_u32", 6, 6, 10)
    a.salu("s_lshl_b32 s67, s60, 17")
    V("v_add_u32", 6, "s67", 6)
    a.salu("s_lshl_b32 s64, s9, 19")
    a.salu("s_lshl_b32 s61, s8, 8")
    a.salu("s_add_u32 s64, s64, s61")
    for i in range(4):
        a.salu(f"s_add_u32 s62, s64, {4 * i * 8192 - 1024 * i}")
        a.dma4(6, 44, "s62", 1024 * i)
    V("v_lshlrev_b32", 20, "11", 19)
    V("v_mul_u32_u24", 21, "0x140", 16)
    V("v_add_u32", 20, 20, 21)
    V("v_add_u32", 20, 20, 17)
    V("v_add_u32", 24, "s65", 20)
    for dt in range(1, 4):
        V("v_xor_b32", 24 + dt, str(64 * dt), 24)
    a.salu("s_lshl_b32 s66, s4, 5")
    a.salu("s_add_u32 s66, s66, s8")
    a.salu("s_lshl_b32 s66, s66, 5")
    a.salu("s_lshl_b32 s61, s9, 2")
    a.salu("s_add_u32 s66, s66, s61")
    a.salu("s_add_u32 s66, s66, s60")
    a.salu("s_lshl_b32 s66, s66, 12")
    a.salu(f"s_add_u32 s66, s66, {WQOFF}")
    a.wait_all_vm()
    a.barrier()
    for dt in range(4):
        a.ds_read_tr(32 + 4 * dt, 24 + dt, 0)
        a.ds_read_tr(34 + 4 * dt, 24 + dt, 1024)
    for dt in range(4):
        a.buf_store4(32 + 4 * dt, 2, OS, "s66", 1024 * dt)
    a.buf_store4(60, 2, OS, "s7", 0)
    a.raw("    s_endpgm")
    a.raw("L_prep_wo:")
    a.vm_seq, a.vm_done, a.lg_seq, a.lg_done, a.pend = st0
    a.hist = []
    if WO_IN_K1:
        a.buf_store4(60, 2, OS, "s7", 0)
        a.raw("L_prep_end:")
        a.raw("    s_endpgm")
        return a
    a.salu("s_sub_u32 s3, s2, 512")
    a.salu("s_lshr_b32 s4, s3, 8")
    a.salu("s_cmp_eq_u32 s4, 0")
    a.salu("s_cselect_b64 s[10:11], s[24:25], s[34:35]")
    make_srd(a, 44, 10, 4 << 20)
    a.salu("s_lshr_b32 s8, s3, 5")
    a.salu("s_and_b32 s8, s8, 7")
    a.salu("s_and_b32 s9, s3, 31")
    V("v_lshrrev_b32", 8, "3", 0)
    V("v_lshlrev_b32", 8, "10", 8)
    V("v_and_b32", 9, "7", 0)
    V("v_lshrrev_b32", 10, "4", 0)
    V("v_and_b32", 10, "1", 10)
    V("v_lshlrev_b32", 10, "2", 10)
    V("v_xor_b32", 9, 9, 10)
    V("v_lshlrev_b32", 9, "4", 9)
    V("v_add_u32", 6, 8, 9)
    a.salu("s_lshl_b32 s67, s60, 15")
    V("v_add_u32", 6, "s67", 6)
    a.salu("s_lshl_b32 s64, s9, 17")
    a.salu("s_lshl_b32 s61, s8, 7")
    a.salu("s_add_u32 s64, s64, s61")
    for i in range(4):
        a.salu(f"s_add_u32 s62, s64, {8192 * i - 1024 * i}")
        a.dma4(6, 44, "s62", 1024 * i)
    V("v_lshlrev_b32", 20, "10", 19)
    V("v_lshlrev_b32", 21, "7", 16)
    V("v_add_u32", 20, 20, 21)
    V("v_lshrrev_b32", 21, "1", 16)
    V("v_lshlrev_b32", 21, "6", 21)
    V("v_add_u32", 20, 20, 21)
    V("v_add_u32", 20, 20, 17)
    V("v_add_u32", 24, "s65", 20)
    V("v_xor_b32", 25, "64", 24)
    a.salu("s_lshl_b32 s66, s4, 22")
    a.salu("s_lshl_b32 s61, s8, 19")
    a.salu("s_add_u32 s66, s66, s61")
    a.salu("s_lshl_b32 s61, s9, 14")
    a.salu("s_add_u32 s66, s66, s61")
    a.salu("s_add_u32 s66, s66, s65")
    a.salu(f"s_add_u32 s66, s66, {WOOFF}")
    a.wait_all_vm()
    a.barrier()
    for q in range(2):
        for nt in range(2):
            a.ds_read_tr(32 + 8 * q + 4 * nt, 24 + nt, q * 2048)
            a.ds_read_tr(34 + 8 * q + 4 * nt, 24 + nt, q * 2048 + 512)
    for q in range(2):
        for nt in range(2):
            a.buf_store4(32 + 8 * q + 4 * nt, 2, OS, "s66", (2 * q + nt) * 1024)
    a.buf_store4(60, 2, OS, "s7", 0)
    a.raw("L_prep_end:")
    a.raw("    s_endpgm")
    return a


def gen_k1():
    nwg = 1024 // NITEMS
    a = Asm()
    a.raw(".p2align 8")
    a.raw("attn_kernel:")
    a.salu(f"s_cmp_ge_u32 s2, {nwg}")
    a.salu("s_cbranch_scc1 L_attn_end")
    a.salu("s_load_dwordx16 s[16:31], s[0:1], 0")
    a.salu("s_load_dwordx4 s[32:35], s[0:1], 64")
    a.salu("s_load_dwordx2 s[36:37], s[0:1], 96")
    a.salu("s_and_b32 s3, s2, 7")
    a.salu("s_lshr_b32 s4, s2, 3")
    a.salu("s_lshr_b32 s5, s3, 2")
    if os.environ.get("MAPB", "") == "1":
        assert NITEMS == 1
        a.salu("s_and_b32 s6, s3, 3")
        a.salu("s_lshr_b32 s7, s4, 5")
        a.salu("s_and_b32 s8, s4, 31")
        a.salu("s_lshl_b32 s6, s6, 2")
        a.salu("s_add_u32 s7, s7, s6")
    else:
        a.salu("s_and_b32 s6, s3, 3")
        a.salu("s_lshr_b32 s7, s4, 3")
        a.salu("s_and_b32 s8, s4, 7")
        a.salu("s_lshl_b32 s6, s6, 3")
        a.salu("s_add_u32 s8, s8, s6")
    a.emit("v_lshrrev_b32 v1, 6, v0", 'valu', w=[1], r=[0])
    a.emit("v_and_b32 v0, 63, v0", 'valu', w=[0], r=[0])
    a.emit("v_readfirstlane_b32 s60, v1", 'rfl', r=[1], sw=[60])
    a.salu("s_waitcnt lgkmcnt(0)")
    a.salu("s_cmp_eq_u32 s5, 0")
    a.salu("s_cselect_b64 s[10:11], s[16:17], s[26:27]")
    a.salu("s_cselect_b64 s[12:13], s[18:19], s[28:29]")
    a.salu("s_cselect_b64 s[14:15], s[20:21], s[30:31]")
    a.salu("s_cselect_b64 s[38:39], s[22:23], s[32:33]")
    make_srd(a, 40, 10, 2 << 20)
    make_srd(a, 44, 12, 64 << 20)
    make_srd(a, 48, 14, 64 << 20)
    make_srd(a, 52, 38, 4 << 20)
    make_srd(a, 56, 36, WSZ)
    XS, KS, VS, WS, OS = 40, 44, 48, 52, 56
    RSH = {1: 9, 2: 8}[NITEMS]
    a.salu(f"s_lshr_b32 s72, s2, {RSH}")
    a.salu("s_cmp_eq_u32 s72, 0")
    a.salu("s_cselect_b64 s[74:75], s[24:25], s[34:35]")
    make_srd(a, 76, 74, 4 << 20)
    WOS = 76
    BSTEP = 16 // NITEMS
    a.salu("s_lshl_b32 s61, s7, 5")
    a.salu("s_add_u32 s61, s61, s8")
    a.salu("s_lshl_b32 s61, s61, 17")
    a.salu("s_lshl_b32 s64, s8, 8")
    a.salu("s_lshl_b32 s65, s60, 12")
    a.salu(f"s_mov_b32 s63, {f32hex(SCALE_LOG2E)}")
    a.salu(f"s_mov_b32 s66, {f32hex(-SCALE_LOG2E)}")
    V = a.valu
    V("v_lshrrev_b32", 8, "4", 0)
    V("v_and_b32", 9, "15", 0)
    V("v_lshlrev_b32", 10, "2", 8)
    V("v_xor_b32", 10, 10, 9)
    V("v_lshlrev_b32", 10, "4", 10)
    V("v_lshlrev_b32", 11, "8", 8)
    V("v_add_u32", 1, 10, 11)
    V("v_add_u32", 1, "s65", 1)
    V("v_lshlrev_b32", 6, "4", 0)
    V("v_add_u32", 6, "s65", 6)
    a.salu("s_lshl_b32 s64, s5, 5")
    a.salu("s_add_u32 s64, s64, s8")
    a.salu("s_lshl_b32 s64, s64, 17")
    a.salu(f"s_add_u32 s64, s64, {WQOFF}")
    V("v_xor_b32", 12, 9, 8)
    V("v_lshlrev_b32", 12, "4", 12)
    V("v_add_u32", 12, 12, 11)
    V("v_add_u32", 2, "s65", 12)
    a.salu("s_lshl_b32 s73, s5, 4")
    a.salu("s_add_u32 s73, s73, s7")
    a.salu("s_lshl_b32 s73, s73, 2")
    a.salu("s_add_u32 s73, s73, s60")
    a.salu("s_lshl_b32 s73, s73, 15")
    a.salu(f"s_add_u32 s73, s73, {XOFF}")
    V("v_lshlrev_b32", 7, "4", 0)

    def issue(key, slot):
        kind, it, idx = key
        a.salu(f"s_add_u32 m0, s65, {slot * 16384}", m0w=True)
        last = None
        if kind == 'W':
            a.salu(f"s_add_u32 s62, s64, {idx * 16384}")
            for i in range(4):
                last = a.dma4(6, OS, "s62", 1024 * i)
        else:
            a.salu(f"s_add_u32 s62, s61, {idx * 16384 + it * BSTEP * 32 * 131072}")
            for i in range(4):
                if kind == 'K':
                    if i == 0:
                        last = a.dma4(2, KS, "s62", 0, KV_FLAGS)
                    else:
                        V("v_xor_b32", 3, str(64 * i), 2)
                        last = a.dma4(3, KS, "s62", 1024 * i, KV_FLAGS)
                else:
                    last = a.dma4(1, VS, "s62", 1024 * i, KV_FLAGS)
        return last

    order, iorder = [], []
    for it in range(NITEMS):
        order += [('W', it, i) for i in range(8)] + [('K', it, i) for i in range(8)] + [('V', it, i) for i in range(8)]
        iorder += [('W', it, 0), ('W', it, 1), ('W', it, 2), ('K', it, 0), ('K', it, 1)]
        iorder += [('W', it, i) for i in range(3, 8)] + [('K', it, i) for i in range(2, 8)] + [('V', it, i) for i in range(8)]
    tm = TileMgr(a, 5, order, iorder, issue)
    XF = 128

    def xload(it, ks):
        if ks % 4 == 0 or it > 0:
            a.salu(f"s_add_u32 s71, s73, {it * BSTEP * 4 * 32768 + (ks // 4) * 4096}")
        a.buf_load4(XF + 4 * ks, 7, OS, "s71", (ks % 4) * 1024)

    tm.issue_next()
    for ks in range(32):
        xload(0, ks)
    tm.fill()

    def tr_addrs(hmul):
        V("v_lshrrev_b32", 16, "2", 0)
        V("v_and_b32", 16, "3", 16)
        V("v_lshrrev_b32", 17, "4", 0)
        V("v_and_b32", 17, "1", 17)
        V("v_and_b32", 18, "3", 0)
        V("v_lshrrev_b32", 19, "5", 0)
        V("v_lshlrev_b32", 19, str(8 + {4: 2, 8: 3}[hmul]), 19)
        V("v_mul_u32_u24", 20, "0x140", 16)
        V("v_add_u32", 19, 19, 20)
        V("v_lshlrev_b32", 17, "5", 17)
        V("v_add_u32", 19, 19, 17)
        V("v_lshlrev_b32", 18, "3", 18)
        V("v_add_u32", 24, 19, 18)
        for dt in range(1, 4):
            V("v_xor_b32", 24 + dt, str(64 * dt), 24)
        for dt in range(4):
            V("v_add_u32", 28 + dt, "0x8000", 24 + dt)

    def tr_read(d, dt, off):
        if off >= 32768:
            a.ds_read_tr(d, 28 + dt, off - 32768)
        else:
            a.ds_read_tr(d, 24 + dt, off)

    RING, NR, D = 32, 8, 6
    QA = 64
    QF = QA
    SA = 96
    SP = 128
    OA = 64
    T = 8
    PB = 16
    MX0, MX1 = 4, 5
    NEGMC, LS = 4, 5

    for it in range(NITEMS):
        V("v_lshlrev_b32", 24, "4", 0)
        V("v_add_u32", 28, "0x8000", 24)
        items = []
        for ks in range(32):
            j, kq = ks // 4, ks % 4
            for dt in range(4):
                def reads(reg, j=j, kq=kq, dt=dt):
                    off = tm.base(('W', it, j)) + (4 * kq + dt) * 1024
                    if off >= 32768:
                        a.ds_read_b128(reg, 28, off - 32768)
                    else:
                        a.ds_read_b128(reg, 24, off)

                def mf(reg, ks=ks, dt=dt):
                    a.mfma32(QA + 16 * dt, reg, XF + 4 * ks, None if ks == 0 else QA + 16 * dt)
                items.append(dict(tile=('W', it, j), first=(kq == 0 and dt == 0), mode='late', reads=reads, mfma=mf))
        run_pipeline(a, tm, items, {}, RING, NR, D)

        V("v_and_b32", 16, "31", 0)
        V("v_lshlrev_b32", 16, "8", 16)
        V("v_and_b32", 17, "15", 0)
        V("v_lshrrev_b32", 18, "5", 0)
        V("v_xor_b32", 17, 17, 18)
        V("v_lshlrev_b32", 17, "4", 17)
        V("v_add_u32", 8, 16, 17)
        for kk in range(1, 8):
            V("v_xor_b32", 8 + kk, str(32 * kk), 8)
        for kk in range(8):
            V("v_add_u32", 16 + kk, "0x8000", 8 + kk)
        V("v_mov_b32", MX0, "0xff800000")
        V("v_mov_b32", MX1, "0xff800000")
        for kk in range(8):
            for i in range(4):
                a.cvt_pk(QF + 4 * kk + i, QA + 8 * kk + 2 * i, QA + 8 * kk + 2 * i + 1)
        for kk in range(8):
            a.swap32(QF + 4 * kk + 0, QF + 4 * kk + 2)
            a.swap32(QF + 4 * kk + 1, QF + 4 * kk + 3)

        items = []
        fillers = {}

        def post_sub(u):
            ops = []
            sa = SA + 16 * (u % 2)
            for i in range(8):
                mx = MX0 + (i % 2)
                ops.append(lambda i=i, mx=mx: a.emit(
                    f"v_max3_f32 v{mx}, v{sa + 2 * i}, v{sa + 2 * i + 1}, v{mx}", 'valu',
                    w=[mx], r=[sa + 2 * i, sa + 2 * i + 1, mx]))
                ops.append(lambda i=i: a.cvt_pk(SP + 8 * u + i, sa + 2 * i, sa + 2 * i + 1))
            return ops

        for u in range(16):
            j, st = u // 2, u % 2
            for kk in range(8):
                def reads(reg, j=j, st=st, kk=kk):
                    off = tm.base(('K', it, j)) + st * 8192
                    if off >= 32768:
                        a.ds_read_b128(reg, 16 + kk, off - 32768)
                    else:
                        a.ds_read_b128(reg, 8 + kk, off)

                def mf(reg, u=u, kk=kk):
                    sa = SA + 16 * (u % 2)
                    a.mfma32(sa, reg, QF + 4 * kk, None if kk == 0 else sa)
                items.append(dict(tile=('K', it, j), first=(st == 0 and kk == 0),
                                  mode=('late' if j == 0 else 'early'), reads=reads, mfma=mf))
            if u >= 1:
                merge(fillers, spread(post_sub(u - 1), 8 * u + 2, 6))
        run_pipeline(a, tm, items, fillers, RING, NR, D)
        for f in post_sub(15):
            f()
        V("v_max_f32", MX0, MX0, MX1)
        V("v_mov_b32", MX1, MX0)
        a.swap32(MX0, MX1)
        V("v_max_f32", MX0, MX0, MX1)
        a.cvt_pk(MX1, MX0, MX0)
        V("v_lshlrev_b32", MX1, "16", MX1)
        V("v_mul_f32", NEGMC, "s66", MX1)
        V("v_mov_b32", LS, "0")
        tr_addrs(4)

        def p_ops(s):
            ops = []
            sp = SP + 4 * s
            pb = PB + 4 * (s % 2)
            for i in range(4):
                ops.append(lambda i=i: V("v_lshlrev_b32", T + 2 * i, "16", sp + i))
                ops.append(lambda i=i: V("v_and_b32", T + 2 * i + 1, "0xffff0000", sp + i))
            for i in range(8):
                ops.append(lambda i=i: V("v_fma_f32", T + i, T + i, "s63", NEGMC))
            for i in range(8):
                ops.append(lambda i=i: V("v_exp_f32", T + i, T + i, kind='trans'))
            for i in range(4):
                ops.append(lambda i=i: V("v_add_f32", LS, LS, T + 2 * i))
                ops.append(lambda i=i: a.cvt_pk(pb + i, T + 2 * i, T + 2 * i + 1))
                ops.append(lambda i=i: V("v_add_f32", LS, LS, T + 2 * i + 1))
            return ops

        for f in p_ops(0):
            f()
        items = []
        fillers = {}
        for s in range(32):
            j, m = s // 4, s % 4
            for dt in range(4):
                def reads(reg, j=j, m=m, dt=dt):
                    base = tm.base(('V', it, j)) + (16 * m) * 256
                    tr_read(reg, dt, base)
                    tr_read(reg + 2, dt, base + 8 * 256)

                def mf(reg, s=s, dt=dt):
                    a.mfma32(OA + 16 * dt, reg, PB + 4 * (s % 2), None if s == 0 else OA + 16 * dt)
                items.append(dict(tile=('V', it, j), first=(m == 0 and dt == 0),
                                  mode=('late' if j == 0 else 'early'), reads=reads, mfma=mf))
            if s < 31:
                merge(fillers, spread(p_ops(s + 1), 4 * s, 4))
            if it + 1 < NITEMS:
                def xl(s=s):
                    xload(it + 1, s)
                xl.mem = True
                fillers.setdefault(4 * s + 3, []).append(xl)
        run_pipeline(a, tm, items, fillers, RING, NR, D)

        RL = 16
        nfr = 2 if WO_IN_K1 else 0
        if WO_IN_K1:
            a.salu(f"s_and_b32 s80, s2, {(1 << RSH) - 1}")
            if NITEMS > 1:
                a.salu(f"s_lshl_b32 s80, s80, {NITEMS - 1}")
                a.salu(f"s_add_u32 s80, s80, {it}")
            a.salu("s_lshl_b32 s81, s80, 2")
            a.salu("s_add_u32 s81, s81, s60")
            a.salu("s_and_b32 s82, s81, 255")
            a.salu("s_lshr_b32 s83, s80, 6")
            a.salu("s_lshl_b32 s82, s82, 14")
            a.salu("s_lshl_b32 s83, s83, 7")
            a.salu("s_add_u32 s82, s82, s83")
            a.salu("s_add_u32 s83, s82, 4096")
            V("v_lshrrev_b32", 9, "5", 0)
            V("v_lshlrev_b32", 9, "13", 9)
            V("v_and_b32", 10, "31", 0)
            V("v_lshlrev_b32", 10, "1", 10)
            V("v_add_u32", 9, 9, 10)
        for i in range(nfr):
            for e in range(8):
                reg = 32 + 8 * i + e
                so = "s82" if e < 4 else "s83"
                a.emit(f"buffer_load_ushort v{reg}, v9, s[{WOS}:{WOS + 3}], {so} offen offset:{(e % 4) * 1024 + 64 * i}",
                       'vmem_ld', w=[reg], r=[9])
        V("v_mov_b32", 8, LS)
        a.swap32(LS, 8)
        V("v_add_f32", LS, LS, 8)
        V("v_rcp_f32", LS, LS, kind='trans')
        a.salu("s_lshl_b32 s68, s5, 24")
        a.salu("s_lshl_b32 s69, s7, 20")
        a.salu("s_add_u32 s68, s68, s69")
        a.salu("s_lshl_b32 s69, s60, 18")
        a.salu("s_add_u32 s68, s68, s69")
        a.salu("s_lshl_b32 s69, s8, 13")
        a.salu("s_add_u32 s68, s68, s69")
        if it:
            a.salu(f"s_add_u32 s68, s68, {it * BSTEP << 20}")
        V("v_lshlrev_b32", 8, "4", 0)
        for j in range(8):
            for i in range(8):
                V("v_mul_f32", OA + 8 * j + i, OA + 8 * j + i, LS)
            for i in range(4):
                a.cvt_pk(OA + 4 * j + i, OA + 8 * j + 2 * i, OA + 8 * j + 2 * i + 1)
        for j in range(8):
            a.swap32(OA + 4 * j + 0, OA + 4 * j + 2)
            a.swap32(OA + 4 * j + 1, OA + 4 * j + 3)
        for j in range(8):
            if j == 4:
                a.salu("s_add_u32 s68, s68, 4096")
            a.buf_store4(OA + 4 * j, 8, OS, "s68", (j % 4) * 1024)
        if WO_IN_K1:
            a.salu("s_lshl_b32 s84, s72, 22")
            a.salu("s_lshl_b32 s85, s81, 11")
            a.salu("s_add_u32 s84, s84, s85")
            a.salu(f"s_add_u32 s84, s84, {WOOFF}")
        for i in range(nfr):
            for e in range(4):
                V("v_lshl_or_b32", RL + 4 * i + e, 32 + 8 * i + 2 * e + 1, "16", 32 + 8 * i + 2 * e)
        for i in range(nfr):
            a.buf_store4(RL + 4 * i, 8, OS, "s84", 1024 * i)
    a.raw("L_attn_end:")
    a.raw("    s_endpgm")
    return a


def gen_k2():
    a = Asm()
    a.raw(".p2align 8")
    a.raw("oproj_kernel:")
    a.salu("s_cmp_ge_u32 s2, 256")
    a.salu("s_cbranch_scc1 L_oproj_end")
    a.salu("s_load_dwordx2 s[20:21], s[0:1], 80")
    a.salu("s_load_dwordx2 s[22:23], s[0:1], 96")
    a.salu("s_and_b32 s3, s2, 7")
    a.salu("s_lshr_b32 s4, s2, 3")
    a.salu("s_lshr_b32 s5, s3, 2")
    a.salu("s_and_b32 s6, s3, 3")
    a.salu("s_lshl_b32 s6, s6, 2")
    a.salu("s_lshr_b32 s7, s4, 3")
    a.salu("s_add_u32 s6, s6, s7")
    a.salu("s_and_b32 s7, s4, 7")
    a.emit("v_lshrrev_b32 v1, 6, v0", 'valu', w=[1], r=[0])
    a.emit("v_and_b32 v0, 63, v0", 'valu', w=[0], r=[0])
    a.emit("v_readfirstlane_b32 s60, v1", 'rfl', r=[1], sw=[60])
    a.salu("s_waitcnt lgkmcnt(0)")
    make_srd(a, 44, 22, WSZ)
    make_srd(a, 48, 20, 4 << 20)
    OS, OUT = 44, 48
    V = a.valu
    a.salu("s_lshl_b32 s65, s60, 12")
    a.salu("s_lshl_b32 s64, s7, 7")
    a.salu("s_lshl_b32 s71, s5, 22")
    a.salu("s_lshl_b32 s69, s7, 19")
    a.salu("s_add_u32 s71, s71, s69")
    a.salu(f"s_add_u32 s71, s71, {32 << 20}")
    V("v_lshlrev_b32", 2, "4", 0)
    V("v_add_u32", 1, "s65", 2)
    V("v_add_u32", 3, "0xc000", 2)
    a.salu("s_lshl_b32 s68, s5, 24")
    a.salu("s_lshl_b32 s69, s6, 20")
    a.salu("s_add_u32 s68, s68, s69")
    a.salu("s_lshl_b32 s69, s60, 18")
    a.salu("s_add_u32 s68, s68, s69")

    NSLOT = int(os.environ.get("K2_NSLOT", "6"))

    def issue(key, slot):
        idx = key[1]
        a.salu(f"s_add_u32 m0, s65, {slot * 16384}", m0w=True)
        a.salu(f"s_add_u32 s62, s71, {idx * 16384}")
        last = None
        for i in range(4):
            last = a.dma4(1, OS, "s62", 1024 * i)
        return last

    order = [('W', i) for i in range(32)]
    tm = TileMgr(a, NSLOT, order, order, issue)
    OF, NOF, OD = 96, int(os.environ.get("K2_NOF", "24")), int(os.environ.get("K2_OD", "20"))
    ACC = 64
    ld_state = dict(n=0)

    def load_frag():
        n = ld_state['n']
        if n >= 256:
            return
        if n % 4 == 0 and n > 0:
            a.salu("s_add_u32 s68, s68, 4096")
        a.buf_load4(OF + 4 * (n % NOF), 2, OS, "s68", (n % 4) * 1024)
        ld_state['n'] = n + 1
        if NO_COMPUTE:
            a.pend.clear()
            if a.vm_seq - a.vm_done > 40:
                a.wait_vm_seq(a.vm_seq - 40)
    load_frag.mem = True

    tm.issue_next()
    for _ in range(8):
        load_frag()
    tm.fill()
    for _ in range(OD - 8):
        load_frag()

    RING, NR, D = 32, 8, 6
    items = []
    fillers = {}
    for s in range(256):
        j, q = s // 8, s % 8
        for nt in range(2):
            def reads(reg, j=j, q=q, nt=nt):
                off = tm.base(('W', j)) + (2 * q + nt) * 1024
                if off >= 49152:
                    a.ds_read_b128(reg, 3, off - 49152)
                else:
                    a.ds_read_b128(reg, 2, off)

            def mf(reg, s=s, nt=nt):
                a.mfma32(ACC + 16 * nt, reg, OF + 4 * (s % NOF), None if s == 0 else ACC + 16 * nt)
            items.append(dict(tile=('W', j), first=(q == 0 and nt == 0), mode=('late' if j == 0 else 'early'),
                              reads=reads, mfma=mf))
        fillers.setdefault(2 * s + 1, []).append(load_frag)
    run_pipeline(a, tm, items, fillers, RING, NR, D)

    a.salu("s_lshl_b32 s68, s6, 18")
    a.salu("s_lshl_b32 s69, s60, 16")
    a.salu("s_add_u32 s68, s68, s69")
    a.salu("s_lshl_b32 s69, s5, 10")
    a.salu("s_add_u32 s68, s68, s69")
    a.salu("s_add_u32 s68, s68, s64")
    V("v_and_b32", 8, "31", 0)
    V("v_lshlrev_b32", 8, "11", 8)
    V("v_lshrrev_b32", 9, "5", 0)
    V("v_lshlrev_b32", 9, "4", 9)
    V("v_add_u32", 8, 8, 9)
    for j in range(4):
        for i in range(4):
            a.cvt_pk(ACC + 4 * j + i, ACC + 8 * j + 2 * i, ACC + 8 * j + 2 * i + 1)
    for j in range(4):
        a.swap32(ACC + 4 * j + 0, ACC + 4 * j + 2)
        a.swap32(ACC + 4 * j + 1, ACC + 4 * j + 3)
    for j in range(4):
        a.buf_store4(ACC + 4 * j, 8, OUT, "s68", j * 32)
    a.raw("L_oproj_end:")
    a.raw("    s_endpgm")
    return a


HEADER = """; Kernarg layout (104 bytes, ptrs only, base s[0:1]):
;   0 A_x  8 A_k_cache  16 A_v_cache  24 A_wq  32 A_wo  40 B_x  48 B_k_cache  56 B_v_cache  64 B_wq  72 B_wo
;   80 d_out  88 d_debug  96 d_ws
; Generated by gen/gen3.py (hand-written generator).  Three launches:
;   prep_kernel : re-layout wq/wo/x into MFMA fragment order in d_ws
;   attn_kernel : per (branch,b,head): Q = x@Wq_h, softmax(QK^T)V -> O (bf16, MFMA-fragment order) in d_ws
;   oproj_kernel: out = O @ Wo (128x64 tiles)
; @launch kernel=prep_kernel grid=(1024,1,1) block=(256,1,1) lds=16384
; @launch kernel=attn_kernel grid=(%d,1,1) block=(256,1,1) lds=81920
; @launch kernel=oproj_kernel grid=(256,1,1) block=(256,1,1) lds=%d
.amdgcn_target "amdgcn-amd-amdhsa--gfx950"
.text
.globl prep_kernel
.type prep_kernel,@function
.globl attn_kernel
.type attn_kernel,@function
.globl oproj_kernel
.type oproj_kernel,@function
""" % (1024 // NITEMS, 16384 * int(os.environ.get("K2_NSLOT", "6")))

KD = """.amdhsa_kernel {name}
  .amdhsa_next_free_vgpr {vgpr}
  .amdhsa_next_free_sgpr 102
  .amdhsa_accum_offset {acc}
  .amdhsa_group_segment_fixed_size 0
  .amdhsa_kernarg_size 104
  .amdhsa_user_sgpr_count 2
  .amdhsa_user_sgpr_kernarg_segment_ptr 1
  .amdhsa_system_sgpr_workgroup_id_x 1
.end_amdhsa_kernel
"""


def main():
    k0 = gen_k0()
    k1 = gen_k1()
    k2 = gen_k2()
    txt = HEADER + k0.text() + k1.text() + k2.text()
    txt += '.section .rodata,"a"\n.p2align 6\n'
    txt += KD.format(name="prep_kernel", vgpr=64, acc=64)
    txt += ".p2align 6\n"
    txt += KD.format(name="attn_kernel", vgpr=256, acc=256)
    txt += ".p2align 6\n"
    txt += KD.format(name="oproj_kernel", vgpr=256, acc=256)
    out = sys.argv[1] if len(sys.argv) > 1 else f"cdna_kernels/{NAME}.s"
    open(out, "w").write(txt)
    print("k1 inst", k1.n_inst, "nops", k1.n_nop, " k2 inst", k2.n_inst, "nops", k2.n_nop, file=sys.stderr)


main()
```

```python
import struct
import sys
import os

sys.path.insert(0, os.path.dirname(os.path.abspath(__file__)))
from asmgen import Asm, R, vr

NAME = "concat_heads__mha_block_cached__gqa_block_cached__near_ridge"


def f32hex(x):
    return "0x%08x" % struct.unpack("<I", struct.pack("<f", x))[0]


SCALE_LOG2E = (128 ** -0.5) * 1.4426950408889634
KV_FLAGS = os.environ.get("KV_FLAGS", " nt")
ST_FLAGS = os.environ.get("ST_FLAGS", "")
K2LD_FLAGS = os.environ.get("K2LD_FLAGS", "")
XW_FLAGS = os.environ.get("XW_FLAGS", "")
NO_COMPUTE = os.environ.get("NO_COMPUTE", "") == "1"
NITEMS = int(os.environ.get("NITEMS", "1"))
WOOFF, WQOFF, XOFF, WSZ = 32 << 20, 40 << 20, 48 << 20, 52 << 20
WO_IN_K1 = os.environ.get("WO_IN_K1", "1") == "1"


class TileMgr:
    def __init__(self, a, nslots, order, issue_order, issue_fn, slot_bytes=16384):
        self.a = a
        self.free = list(range(nslots))
        self.order = order
        self.issue_order = list(issue_order)
        self.index = {k: i for i, k in enumerate(order)}
        self.slot = {}
        self.seq = {}
        self.issue_fn = issue_fn
        self.freed = set()
        self.slot_bytes = slot_bytes

    def issue_next(self):
        key = self.issue_order.pop(0)
        s = self.free.pop(0)
        self.slot[key] = s
        self.seq[key] = self.issue_fn(key, s)

    def fill(self):
        while self.free and self.issue_order:
            self.issue_next()

    def ready(self, key, mode):
        a = self.a
        t = self.index[key]
        assert key in self.slot, key
        if self.seq[key] >= 0:
            a.wait_vm_seq(self.seq[key])
        a.barrier()
        lim = t if mode == 'late' else t - 1
        for k in self.order[:max(lim, 0)]:
            if k not in self.freed:
                self.freed.add(k)
                self.free.append(self.slot[k])
        self.fill()

    def base(self, key):
        return self.slot[key] * self.slot_bytes


def run_pipeline(a, tm, items, fillers, ring_base, NR, D):
    n = len(items)
    nxt = 0
    for i in range(n):
        while nxt < n and nxt <= i + D:
            it = items[nxt]
            if it.get('first'):
                if it['mode'] == 'late' and nxt > i:
                    break
                tm.ready(it['tile'], it['mode'])
            if not NO_COMPUTE:
                it['reads'](ring_base + 4 * (nxt % NR))
            nxt += 1
        for f in fillers.get(i, []):
            if NO_COMPUTE and not getattr(f, 'mem', False):
                continue
            f()
        if not NO_COMPUTE:
            items[i]['mfma'](ring_base + 4 * (i % NR))


def spread(ops, start, count):
    res = {}
    per = (len(ops) + count - 1) // count
    for j, op in enumerate(ops):
        res.setdefault(start + j // per, []).append(op)
    return res


def merge(dst, src):
    for k, v in src.items():
        dst.setdefault(k, []).extend(v)


def make_srd(a, d, ptr, nbytes):
    a.salu(f"s_mov_b32 s{d}, s{ptr}")
    a.salu(f"s_and_b32 s{d + 1}, s{ptr + 1}, 0xffff")
    a.salu(f"s_mov_b32 s{d + 2}, {nbytes}")
    a.salu(f"s_mov_b32 s{d + 3}, 0x00020000")


def gen_k0():
    a = Asm()
    V = a.valu
    a.raw(".p2align 8")
    a.raw("prep_kernel:")
    a.salu("s_cmp_ge_u32 s2, 1024")
    a.salu("s_cbranch_scc1 L_prep_end")
    a.salu("s_load_dwordx16 s[16:31], s[0:1], 0")
    a.salu("s_load_dwordx4 s[32:35], s[0:1], 64")
    a.salu("s_load_dwordx2 s[36:37], s[0:1], 96")
    a.emit("v_lshrrev_b32 v1, 6, v0", 'valu', w=[1], r=[0])
    a.emit("v_and_b32 v0, 63, v0", 'valu', w=[0], r=[0])
    a.emit("v_readfirstlane_b32 s60, v1", 'rfl', r=[1], sw=[60])
    a.salu("s_waitcnt lgkmcnt(0)")
    make_srd(a, 56, 36, WSZ)
    OS = 56
    a.salu("s_lshl_b32 s65, s60, 12")
    V("v_lshlrev_b32", 2, "4", 0)
    a.salu("s_lshl_b32 s3, s2, 2")
    a.salu("s_add_u32 s3, s3, s60")
    a.salu("s_lshr_b32 s4, s3, 11")
    a.salu("s_cmp_eq_u32 s4, 0")
    a.salu("s_cselect_b64 s[10:11], s[16:17], s[26:27]")
    make_srd(a, 40, 10, 2 << 20)
    a.salu("s_lshr_b32 s5, s3, 5")
    a.salu("s_and_b32 s5, s5, 63")
    a.salu("s_lshl_b32 s5, s5, 15")
    a.salu("s_and_b32 s6, s3, 31")
    a.salu("s_lshl_b32 s6, s6, 5")
    a.salu("s_add_u32 s5, s5, s6")
    V("v_and_b32", 3, "31", 0)
    V("v_lshlrev_b32", 3, "10", 3)
    V("v_lshrrev_b32", 4, "5", 0)
    V("v_lshlrev_b32", 4, "4", 4)
    V("v_add_u32", 3, 3, 4)
    a.buf_load4(60, 3, 40, "s5", 0, os.environ.get("PREP_FLAGS",""))
    a.salu("s_lshl_b32 s7, s3, 10")
    a.salu(f"s_add_u32 s7, s7, {XOFF}")
    V("v_lshrrev_b32", 16, "2", 0)
    V("v_and_b32", 16, "3", 16)
    V("v_lshrrev_b32", 17, "4", 0)
    V("v_and_b32", 17, "1", 17)
    V("v_lshlrev_b32", 17, "5", 17)
    V("v_and_b32", 18, "3", 0)
    V("v_lshlrev_b32", 18, "3", 18)
    V("v_add_u32", 17, 17, 18)
    V("v_lshrrev_b32", 19, "5", 0)
    a.salu("s_mov_b32 m0, s65", m0w=True)
    a.salu("s_cmp_ge_u32 s2, 512")
    a.salu("s_cbranch_scc1 L_prep_wo")
    st0 = (a.vm_seq, a.vm_done, a.lg_seq, a.lg_done, dict(a.pend))
    a.salu("s_lshr_b32 s4, s2, 8")
    a.salu("s_cmp_eq_u32 s4, 0")
    a.salu("s_cselect_b64 s[10:11], s[22:23], s[32:33]")
    make_srd(a, 44, 10, 4 << 20)
    a.salu("s_lshr_b32 s8, s2, 3")
    a.salu("s_and_b32 s8, s8, 31")
    a.salu("s_and_b32 s9, s2, 7")
    V("v_lshrrev_b32", 8, "4", 0)
    V("v_and_b32", 9, "15", 0)
    V("v_lshlrev_b32", 10, "2", 8)
    V("v_xor_b32", 10, 10, 9)
    V("v_lshlrev_b32", 10, "4", 10)
    V("v_lshlrev_b32", 6, "13", 8)
    V("v_add_u32", 6, 6, 10)
    a.salu("s_lshl_b32 s67, s60, 17")
    V("v_add_u32", 6, "s67", 6)
    a.salu("s_lshl_b32 s64, s9, 19")
    a.salu("s_lshl_b32 s61, s8, 8")
    a.salu("s_add_u32 s64, s64, s61")
    for i in range(4):
        a.salu(f"s_add_u32 s62, s64, {4 * i * 8192 - 1024 * i}")
        a.dma4(6, 44, "s62", 1024 * i, os.environ.get("PREP_FLAGS",""))
    V("v_lshlrev_b32", 20, "11", 19)
    V("v_mul_u32_u24", 21, "0x140", 16)
    V("v_add_u32", 20, 20, 21)
    V("v_add_u32", 20, 20, 17)
    V("v_add_u32", 24, "s65", 20)
    for dt in range(1, 4):
        V("v_xor_b32", 24 + dt, str(64 * dt), 24)
    a.salu("s_lshl_b32 s66, s4, 5")
    a.salu("s_add_u32 s66, s66, s8")
    a.salu("s_lshl_b32 s66, s66, 5")
    a.salu("s_lshl_b32 s61, s9, 2")
    a.salu("s_add_u32 s66, s66, s61")
    a.salu("s_add_u32 s66, s66, s60")
    a.salu("s_lshl_b32 s66, s66, 12")
    a.salu(f"s_add_u32 s66, s66, {WQOFF}")
    a.wait_all_vm()
    a.barrier()
    for dt in range(4):
        a.ds_read_tr(32 + 4 * dt, 24 + dt, 0)
        a.ds_read_tr(34 + 4 * dt, 24 + dt, 1024)
    for dt in range(4):
        a.buf_store4(32 + 4 * dt, 2, OS, "s66", 1024 * dt)
    a.buf_store4(60, 2, OS, "s7", 0)
    a.raw("    s_endpgm")
    a.raw("L_prep_wo:")
    a.vm_seq, a.vm_done, a.lg_seq, a.lg_done, a.pend = st0
    a.hist = []
    if WO_IN_K1:
        a.buf_store4(60, 2, OS, "s7", 0)
        a.raw("L_prep_end:")
        a.raw("    s_endpgm")
        return a
    a.salu("s_sub_u32 s3, s2, 512")
    a.salu("s_lshr_b32 s4, s3, 8")
    a.salu("s_cmp_eq_u32 s4, 0")
    a.salu("s_cselect_b64 s[10:11], s[24:25], s[34:35]")
    make_srd(a, 44, 10, 4 << 20)
    a.salu("s_lshr_b32 s8, s3, 5")
    a.salu("s_and_b32 s8, s8, 7")
    a.salu("s_and_b32 s9, s3, 31")
    V("v_lshrrev_b32", 8, "3", 0)
    V("v_lshlrev_b32", 8, "10", 8)
    V("v_and_b32", 9, "7", 0)
    V("v_lshrrev_b32", 10, "4", 0)
    V("v_and_b32", 10, "1", 10)
    V("v_lshlrev_b32", 10, "2", 10)
    V("v_xor_b32", 9, 9, 10)
    V("v_lshlrev_b32", 9, "4", 9)
    V("v_add_u32", 6, 8, 9)
    a.salu("s_lshl_b32 s67, s60, 15")
    V("v_add_u32", 6, "s67", 6)
    a.salu("s_lshl_b32 s64, s9, 17")
    a.salu("s_lshl_b32 s61, s8, 7")
    a.salu("s_add_u32 s64, s64, s61")
    for i in range(4):
        a.salu(f"s_add_u32 s62, s64, {8192 * i - 1024 * i}")
        a.dma4(6, 44, "s62", 1024 * i, os.environ.get("PREP_FLAGS",""))
    V("v_lshlrev_b32", 20, "10", 19)
    V("v_lshlrev_b32", 21, "7", 16)
    V("v_add_u32", 20, 20, 21)
    V("v_lshrrev_b32", 21, "1", 16)
    V("v_lshlrev_b32", 21, "6", 21)
    V("v_add_u32", 20, 20, 21)
    V("v_add_u32", 20, 20, 17)
    V("v_add_u32", 24, "s65", 20)
    V("v_xor_b32", 25, "64", 24)
    a.salu("s_lshl_b32 s66, s4, 22")
    a.salu("s_lshl_b32 s61, s8, 19")
    a.salu("s_add_u32 s66, s66, s61")
    a.salu("s_lshl_b32 s61, s9, 14")
    a.salu("s_add_u32 s66, s66, s61")
    a.salu("s_add_u32 s66, s66, s65")
    a.salu(f"s_add_u32 s66, s66, {WOOFF}")
    a.wait_all_vm()
    a.barrier()
    for q in range(2):
        for nt in range(2):
            a.ds_read_tr(32 + 8 * q + 4 * nt, 24 + nt, q * 2048)
            a.ds_read_tr(34 + 8 * q + 4 * nt, 24 + nt, q * 2048 + 512)
    for q in range(2):
        for nt in range(2):
            a.buf_store4(32 + 8 * q + 4 * nt, 2, OS, "s66", (2 * q + nt) * 1024)
    a.buf_store4(60, 2, OS, "s7", 0)
    a.raw("L_prep_end:")
    a.raw("    s_endpgm")
    return a


def gen_k1():
    nwg = 1024 // NITEMS
    a = Asm()
    a.raw(".p2align 8")
    a.raw("attn_kernel:")
    a.salu(f"s_cmp_ge_u32 s2, {nwg}")
    a.salu("s_cbranch_scc1 L_attn_end")
    a.salu("s_load_dwordx16 s[16:31], s[0:1], 0")
    a.salu("s_load_dwordx4 s[32:35], s[0:1], 64")
    a.salu("s_load_dwordx2 s[36:37], s[0:1], 96")
    a.salu("s_and_b32 s3, s2, 7")
    a.salu("s_lshr_b32 s4, s2, 3")
    a.salu("s_lshr_b32 s5, s3, 2")
    if os.environ.get("MAPB", "") == "1":
        assert NITEMS == 1
        a.salu("s_and_b32 s6, s3, 3")
        a.salu("s_lshr_b32 s7, s4, 5")
        a.salu("s_and_b32 s8, s4, 31")
        a.salu("s_lshl_b32 s6, s6, 2")
        a.salu("s_add_u32 s7, s7, s6")
    else:
        a.salu("s_and_b32 s6, s3, 3")
        a.salu("s_lshr_b32 s7, s4, 3")
        a.salu("s_and_b32 s8, s4, 7")
        a.salu("s_lshl_b32 s6, s6, 3")
        a.salu("s_add_u32 s8, s8, s6")
    a.emit("v_lshrrev_b32 v1, 6, v0", 'valu', w=[1], r=[0])
    a.emit("v_and_b32 v0, 63, v0", 'valu', w=[0], r=[0])
    a.emit("v_readfirstlane_b32 s60, v1", 'rfl', r=[1], sw=[60])
    a.salu("s_waitcnt lgkmcnt(0)")
    a.salu("s_cmp_eq_u32 s5, 0")
    a.salu("s_cselect_b64 s[10:11], s[16:17], s[26:27]")
    a.salu("s_cselect_b64 s[12:13], s[18:19], s[28:29]")
    a.salu("s_cselect_b64 s[14:15], s[20:21], s[30:31]")
    a.salu("s_cselect_b64 s[38:39], s[22:23], s[32:33]")
    make_srd(a, 40, 10, 2 << 20)
    make_srd(a, 44, 12, 64 << 20)
    make_srd(a, 48, 14, 64 << 20)
    make_srd(a, 52, 38, 4 << 20)
    make_srd(a, 56, 36, WSZ)
    XS, KS, VS, WS, OS = 40, 44, 48, 52, 56
    RSH = {1: 9, 2: 8}[NITEMS]
    a.salu(f"s_lshr_b32 s72, s2, {RSH}")
    a.salu("s_cmp_eq_u32 s72, 0")
    a.salu("s_cselect_b64 s[74:75], s[24:25], s[34:35]")
    make_srd(a, 76, 74, 4 << 20)
    WOS = 76
    BSTEP = 16 // NITEMS
    a.salu("s_lshl_b32 s61, s7, 5")
    a.salu("s_add_u32 s61, s61, s8")
    a.salu("s_lshl_b32 s61, s61, 17")
    a.salu("s_lshl_b32 s64, s8, 8")
    a.salu("s_lshl_b32 s65, s60, 12")
    a.salu(f"s_mov_b32 s63, {f32hex(SCALE_LOG2E)}")
    a.salu(f"s_mov_b32 s66, {f32hex(-SCALE_LOG2E)}")
    V = a.valu
    V("v_lshrrev_b32", 8, "4", 0)
    V("v_and_b32", 9, "15", 0)
    V("v_lshlrev_b32", 10, "2", 8)
    V("v_xor_b32", 10, 10, 9)
    V("v_lshlrev_b32", 10, "4", 10)
    V("v_lshlrev_b32", 11, "8", 8)
    V("v_add_u32", 1, 10, 11)
    V("v_add_u32", 1, "s65", 1)
    V("v_lshlrev_b32", 6, "4", 0)
    V("v_add_u32", 6, "s65", 6)
    a.salu("s_lshl_b32 s64, s5, 5")
    a.salu("s_add_u32 s64, s64, s8")
    a.salu("s_lshl_b32 s64, s64, 17")
    a.salu(f"s_add_u32 s64, s64, {WQOFF}")
    V("v_xor_b32", 12, 9, 8)
    V("v_lshlrev_b32", 12, "4", 12)
    V("v_add_u32", 12, 12, 11)
    V("v_add_u32", 2, "s65", 12)
    a.salu("s_lshl_b32 s73, s5, 4")
    a.salu("s_add_u32 s73, s73, s7")
    a.salu("s_lshl_b32 s73, s73, 2")
    a.salu("s_add_u32 s73, s73, s60")
    a.salu("s_lshl_b32 s73, s73, 15")
    a.salu(f"s_add_u32 s73, s73, {XOFF}")
    V("v_lshlrev_b32", 7, "4", 0)

    def issue(key, slot):
        kind, it, idx = key
        a.salu(f"s_add_u32 m0, s65, {slot * 16384}", m0w=True)
        last = None
        if kind == 'W':
            a.salu(f"s_add_u32 s62, s64, {idx * 16384}")
            for i in range(4):
                last = a.dma4(6, OS, "s62", 1024 * i, XW_FLAGS)
        else:
            a.salu(f"s_add_u32 s62, s61, {idx * 16384 + it * BSTEP * 32 * 131072}")
            for i in range(4):
                if kind == 'K':
                    if i == 0:
                        last = a.dma4(2, KS, "s62", 0, KV_FLAGS)
                    else:
                        V("v_xor_b32", 3, str(64 * i), 2)
                        last = a.dma4(3, KS, "s62", 1024 * i, KV_FLAGS)
                else:
                    last = a.dma4(1, VS, "s62", 1024 * i, KV_FLAGS)
        return last

    order, iorder = [], []
    for it in range(NITEMS):
        order += [('W', it, i) for i in range(8)] + [('K', it, i) for i in range(8)] + [('V', it, i) for i in range(8)]
        NW0 = int(os.environ.get("NW0", "3"))
        iorder += [('W', it, i) for i in range(NW0)] + [('K', it, i) for i in range(5 - NW0)]
        iorder += [('W', it, i) for i in range(NW0, 8)] + [('K', it, i) for i in range(5 - NW0, 8)] + [('V', it, i) for i in range(8)]
    tm = TileMgr(a, 5, order, iorder, issue)
    XF = 128

    def xload(it, ks):
        if ks % 4 == 0 or it > 0:
            a.salu(f"s_add_u32 s71, s73, {it * BSTEP * 4 * 32768 + (ks // 4) * 4096}")
        a.buf_load4(XF + 4 * ks, 7, OS, "s71", (ks % 4) * 1024, XW_FLAGS)

    tm.issue_next()
    for ks in range(32):
        xload(0, ks)
    tm.fill()

    def tr_addrs(hmul):
        V("v_lshrrev_b32", 16, "2", 0)
        V("v_and_b32", 16, "3", 16)
        V("v_lshrrev_b32", 17, "4", 0)
        V("v_and_b32", 17, "1", 17)
        V("v_and_b32", 18, "3", 0)
        V("v_lshrrev_b32", 19, "5", 0)
        V("v_lshlrev_b32", 19, str(8 + {4: 2, 8: 3}[hmul]), 19)
        V("v_mul_u32_u24", 20, "0x140", 16)
        V("v_add_u32", 19, 19, 20)
        V("v_lshlrev_b32", 17, "5", 17)
        V("v_add_u32", 19, 19, 17)
        V("v_lshlrev_b32", 18, "3", 18)
        V("v_add_u32", 24, 19, 18)
        for dt in range(1, 4):
            V("v_xor_b32", 24 + dt, str(64 * dt), 24)
        for dt in range(4):
            V("v_add_u32", 28 + dt, "0x8000", 24 + dt)

    def tr_read(d, dt, off):
        if off >= 32768:
            a.ds_read_tr(d, 28 + dt, off - 32768)
        else:
            a.ds_read_tr(d, 24 + dt, off)

    RING, NR, D = 32, 8, 6
    QA = 64
    QF = QA
    SA = 96
    SP = 128
    OA = 64
    T = 8
    PB = 16
    MX0, MX1 = 4, 5
    NEGMC, LS = 4, 5

    for it in range(NITEMS):
        V("v_lshlrev_b32", 24, "4", 0)
        V("v_add_u32", 28, "0x8000", 24)
        items = []
        for ks in range(32):
            j, kq = ks // 4, ks % 4
            for dt in range(4):
                def reads(reg, j=j, kq=kq, dt=dt):
                    off = tm.base(('W', it, j)) + (4 * kq + dt) * 1024
                    if off >= 32768:
                        a.ds_read_b128(reg, 28, off - 32768)
                    else:
                        a.ds_read_b128(reg, 24, off)

                def mf(reg, ks=ks, dt=dt):
                    a.mfma32(QA + 16 * dt, reg, XF + 4 * ks, None if ks == 0 else QA + 16 * dt)
                items.append(dict(tile=('W', it, j), first=(kq == 0 and dt == 0), mode='late', reads=reads, mfma=mf))
        run_pipeline(a, tm, items, {}, RING, NR, D)

        V("v_and_b32", 16, "31", 0)
        V("v_lshlrev_b32", 16, "8", 16)
        V("v_and_b32", 17, "15", 0)
        V("v_lshrrev_b32", 18, "5", 0)
        V("v_xor_b32", 17, 17, 18)
        V("v_lshlrev_b32", 17, "4", 17)
        V("v_add_u32", 8, 16, 17)
        for kk in range(1, 8):
            V("v_xor_b32", 8 + kk, str(32 * kk), 8)
        for kk in range(8):
            V("v_add_u32", 16 + kk, "0x8000", 8 + kk)
        V("v_mov_b32", MX0, "0xff800000")
        V("v_mov_b32", MX1, "0xff800000")
        for kk in range(8):
            for i in range(4):
                a.cvt_pk(QF + 4 * kk + i, QA + 8 * kk + 2 * i, QA + 8 * kk + 2 * i + 1)
        for kk in range(8):
            a.swap32(QF + 4 * kk + 0, QF + 4 * kk + 2)
            a.swap32(QF + 4 * kk + 1, QF + 4 * kk + 3)

        items = []
        fillers = {}

        def post_sub(u):
            ops = []
            sa = SA + 16 * (u % 2)
            for i in range(8):
                mx = MX0 + (i % 2)
                ops.append(lambda i=i, mx=mx: a.emit(
                    f"v_max3_f32 v{mx}, v{sa + 2 * i}, v{sa + 2 * i + 1}, v{mx}", 'valu',
                    w=[mx], r=[sa + 2 * i, sa + 2 * i + 1, mx]))
                ops.append(lambda i=i: a.cvt_pk(SP + 8 * u + i, sa + 2 * i, sa + 2 * i + 1))
            return ops

        for u in range(16):
            j, st = u // 2, u % 2
            for kk in range(8):
                def reads(reg, j=j, st=st, kk=kk):
                    off = tm.base(('K', it, j)) + st * 8192
                    if off >= 32768:
                        a.ds_read_b128(reg, 16 + kk, off - 32768)
                    else:
                        a.ds_read_b128(reg, 8 + kk, off)

                def mf(reg, u=u, kk=kk):
                    sa = SA + 16 * (u % 2)
                    a.mfma32(sa, reg, QF + 4 * kk, None if kk == 0 else sa)
                items.append(dict(tile=('K', it, j), first=(st == 0 and kk == 0),
                                  mode=('late' if j == 0 else 'early'), reads=reads, mfma=mf))
            if u >= 1:
                merge(fillers, spread(post_sub(u - 1), 8 * u + 2, 6))
        run_pipeline(a, tm, items, fillers, RING, NR, D)
        for f in post_sub(15):
            f()
        V("v_max_f32", MX0, MX0, MX1)
        V("v_mov_b32", MX1, MX0)
        a.swap32(MX0, MX1)
        V("v_max_f32", MX0, MX0, MX1)
        a.cvt_pk(MX1, MX0, MX0)
        V("v_lshlrev_b32", MX1, "16", MX1)
        V("v_mul_f32", NEGMC, "s66", MX1)
        V("v_mov_b32", LS, "0")
        tr_addrs(4)

        def p_ops(s):
            ops = []
            sp = SP + 4 * s
            pb = PB + 4 * (s % 2)
            for i in range(4):
                ops.append(lambda i=i: V("v_lshlrev_b32", T + 2 * i, "16", sp + i))
                ops.append(lambda i=i: V("v_and_b32", T + 2 * i + 1, "0xffff0000", sp + i))
            for i in range(8):
                ops.append(lambda i=i: V("v_fma_f32", T + i, T + i, "s63", NEGMC))
            for i in range(8):
                ops.append(lambda i=i: V("v_exp_f32", T + i, T + i, kind='trans'))
            for i in range(4):
                ops.append(lambda i=i: V("v_add_f32", LS, LS, T + 2 * i))
                ops.append(lambda i=i: a.cvt_pk(pb + i, T + 2 * i, T + 2 * i + 1))
                ops.append(lambda i=i: V("v_add_f32", LS, LS, T + 2 * i + 1))
            return ops

        for f in p_ops(0):
            f()
        items = []
        fillers = {}
        for s in range(32):
            j, m = s // 4, s % 4
            for dt in range(4):
                def reads(reg, j=j, m=m, dt=dt):
                    base = tm.base(('V', it, j)) + (16 * m) * 256
                    tr_read(reg, dt, base)
                    tr_read(reg + 2, dt, base + 8 * 256)

                def mf(reg, s=s, dt=dt):
                    a.mfma32(OA + 16 * dt, reg, PB + 4 * (s % 2), None if s == 0 else OA + 16 * dt)
                items.append(dict(tile=('V', it, j), first=(m == 0 and dt == 0),
                                  mode=('late' if j == 0 else 'early'), reads=reads, mfma=mf))
            if s < 31:
                merge(fillers, spread(p_ops(s + 1), 4 * s, 4))
            if it + 1 < NITEMS:
                def xl(s=s):
                    xload(it + 1, s)
                xl.mem = True
                fillers.setdefault(4 * s + 3, []).append(xl)
        run_pipeline(a, tm, items, fillers, RING, NR, D)

        RL = 16
        nfr = 2 if WO_IN_K1 else 0
        if WO_IN_K1:
            a.salu(f"s_and_b32 s80, s2, {(1 << RSH) - 1}")
            if NITEMS > 1:
                a.salu(f"s_lshl_b32 s80, s80, {NITEMS - 1}")
                a.salu(f"s_add_u32 s80, s80, {it}")
            a.salu("s_lshl_b32 s81, s80, 2")
            a.salu("s_add_u32 s81, s81, s60")
            a.salu("s_and_b32 s82, s81, 255")
            a.salu("s_lshr_b32 s83, s80, 6")
            a.salu("s_lshl_b32 s82, s82, 14")
            a.salu("s_lshl_b32 s83, s83, 7")
            a.salu("s_add_u32 s82, s82, s83")
            a.salu("s_add_u32 s83, s82, 4096")
            V("v_lshrrev_b32", 9, "5", 0)
            V("v_lshlrev_b32", 9, "13", 9)
            V("v_and_b32", 10, "31", 0)
            V("v_lshlrev_b32", 10, "1", 10)
            V("v_add_u32", 9, 9, 10)
        for i in range(nfr):
            for e in range(8):
                reg = 32 + 8 * i + e
                so = "s82" if e < 4 else "s83"
                a.emit(f"buffer_load_ushort v{reg}, v9, s[{WOS}:{WOS + 3}], {so} offen offset:{(e % 4) * 1024 + 64 * i}",
                       'vmem_ld', w=[reg], r=[9])
        V("v_mov_b32", 8, LS)
        a.swap32(LS, 8)
        V("v_add_f32", LS, LS, 8)
        V("v_rcp_f32", LS, LS, kind='trans')
        a.salu("s_lshl_b32 s68, s5, 24")
        a.salu("s_lshl_b32 s69, s7, 20")
        a.salu("s_add_u32 s68, s68, s69")
        a.salu("s_lshl_b32 s69, s60, 18")
        a.salu("s_add_u32 s68, s68, s69")
        a.salu("s_lshl_b32 s69, s8, 13")
        a.salu("s_add_u32 s68, s68, s69")
        if it:
            a.salu(f"s_add_u32 s68, s68, {it * BSTEP << 20}")
        V("v_lshlrev_b32", 8, "4", 0)
        for j in range(8):
            for i in range(8):
                V("v_mul_f32", OA + 8 * j + i, OA + 8 * j + i, LS)
            for i in range(4):
                a.cvt_pk(OA + 4 * j + i, OA + 8 * j + 2 * i, OA + 8 * j + 2 * i + 1)
        for j in range(8):
            a.swap32(OA + 4 * j + 0, OA + 4 * j + 2)
            a.swap32(OA + 4 * j + 1, OA + 4 * j + 3)
        for j in range(8):
            if j == 4:
                a.salu("s_add_u32 s68, s68, 4096")
            a.buf_store4(OA + 4 * j, 8, OS, "s68", (j % 4) * 1024, ST_FLAGS)
        if WO_IN_K1:
            a.salu("s_lshl_b32 s84, s72, 22")
            a.salu("s_lshl_b32 s85, s81, 11")
            a.salu("s_add_u32 s84, s84, s85")
            a.salu(f"s_add_u32 s84, s84, {WOOFF}")
        for i in range(nfr):
            for e in range(4):
                V("v_lshl_or_b32", RL + 4 * i + e, 32 + 8 * i + 2 * e + 1, "16", 32 + 8 * i + 2 * e)
        for i in range(nfr):
            a.buf_store4(RL + 4 * i, 8, OS, "s84", 1024 * i, ST_FLAGS)
    a.raw("L_attn_end:")
    a.raw("    s_endpgm")
    return a


def gen_k2():
    a = Asm()
    a.raw(".p2align 8")
    a.raw("oproj_kernel:")
    a.salu("s_cmp_ge_u32 s2, 256")
    a.salu("s_cbranch_scc1 L_oproj_end")
    a.salu("s_load_dwordx2 s[20:21], s[0:1], 80")
    a.salu("s_load_dwordx2 s[22:23], s[0:1], 96")
    a.salu("s_and_b32 s3, s2, 7")
    a.salu("s_lshr_b32 s4, s2, 3")
    a.salu("s_lshr_b32 s5, s3, 2")
    a.salu("s_and_b32 s6, s3, 3")
    a.salu("s_lshl_b32 s6, s6, 2")
    a.salu("s_lshr_b32 s7, s4, 3")
    a.salu("s_add_u32 s6, s6, s7")
    a.salu("s_and_b32 s7, s4, 7")
    a.emit("v_lshrrev_b32 v1, 6, v0", 'valu', w=[1], r=[0])
    a.emit("v_and_b32 v0, 63, v0", 'valu', w=[0], r=[0])
    a.emit("v_readfirstlane_b32 s60, v1", 'rfl', r=[1], sw=[60])
    a.salu("s_waitcnt lgkmcnt(0)")
    make_srd(a, 44, 22, WSZ)
    make_srd(a, 48, 20, 4 << 20)
    OS, OUT = 44, 48
    V = a.valu
    a.salu("s_lshl_b32 s65, s60, 12")
    a.salu("s_lshl_b32 s64, s7, 7")
    a.salu("s_lshl_b32 s71, s5, 22")
    a.salu("s_lshl_b32 s69, s7, 19")
    a.salu("s_add_u32 s71, s71, s69")
    a.salu(f"s_add_u32 s71, s71, {32 << 20}")
    V("v_lshlrev_b32", 2, "4", 0)
    V("v_add_u32", 1, "s65", 2)
    V("v_add_u32", 3, "0xc000", 2)
    a.salu("s_lshl_b32 s68, s5, 24")
    a.salu("s_lshl_b32 s69, s6, 20")
    a.salu("s_add_u32 s68, s68, s69")
    a.salu("s_lshl_b32 s69, s60, 18")
    a.salu("s_add_u32 s68, s68, s69")

    NSLOT = int(os.environ.get("K2_NSLOT", "6"))

    def issue(key, slot):
        idx = key[1]
        a.salu(f"s_add_u32 m0, s65, {slot * 16384}", m0w=True)
        a.salu(f"s_add_u32 s62, s71, {idx * 16384}")
        last = None
        for i in range(4):
            last = a.dma4(1, OS, "s62", 1024 * i, K2LD_FLAGS)
        return last

    order = [('W', i) for i in range(32)]
    tm = TileMgr(a, NSLOT, order, order, issue)
    OF, NOF, OD = 96, int(os.environ.get("K2_NOF", "24")), int(os.environ.get("K2_OD", "20"))
    ACC = 64
    ld_state = dict(n=0)

    def load_frag():
        n = ld_state['n']
        if n >= 256:
            return
        if n % 4 == 0 and n > 0:
            a.salu("s_add_u32 s68, s68, 4096")
        a.buf_load4(OF + 4 * (n % NOF), 2, OS, "s68", (n % 4) * 1024, K2LD_FLAGS)
        ld_state['n'] = n + 1
        if NO_COMPUTE:
            a.pend.clear()
            if a.vm_seq - a.vm_done > 40:
                a.wait_vm_seq(a.vm_seq - 40)
    load_frag.mem = True

    tm.issue_next()
    for _ in range(8):
        load_frag()
    tm.fill()
    for _ in range(OD - 8):
        load_frag()

    RING, NR, D = 32, 8, 6
    items = []
    fillers = {}
    for s in range(256):
        j, q = s // 8, s % 8
        for nt in range(2):
            def reads(reg, j=j, q=q, nt=nt):
                off = tm.base(('W', j)) + (2 * q + nt) * 1024
                if off >= 49152:
                    a.ds_read_b128(reg, 3, off - 49152)
                else:
                    a.ds_read_b128(reg, 2, off)

            def mf(reg, s=s, nt=nt):
                a.mfma32(ACC + 16 * nt, reg, OF + 4 * (s % NOF), None if s == 0 else ACC + 16 * nt)
            items.append(dict(tile=('W', j), first=(q == 0 and nt == 0), mode=('late' if j == 0 else 'early'),
                              reads=reads, mfma=mf))
        fillers.setdefault(2 * s + 1, []).append(load_frag)
    run_pipeline(a, tm, items, fillers, RING, NR, D)

    a.salu("s_lshl_b32 s68, s6, 18")
    a.salu("s_lshl_b32 s69, s60, 16")
    a.salu("s_add_u32 s68, s68, s69")
    a.salu("s_lshl_b32 s69, s5, 10")
    a.salu("s_add_u32 s68, s68, s69")
    a.salu("s_add_u32 s68, s68, s64")
    V("v_and_b32", 8, "31", 0)
    V("v_lshlrev_b32", 8, "11", 8)
    V("v_lshrrev_b32", 9, "5", 0)
    V("v_lshlrev_b32", 9, "4", 9)
    V("v_add_u32", 8, 8, 9)
    for j in range(4):
        for i in range(4):
            a.cvt_pk(ACC + 4 * j + i, ACC + 8 * j + 2 * i, ACC + 8 * j + 2 * i + 1)
    for j in range(4):
        a.swap32(ACC + 4 * j + 0, ACC + 4 * j + 2)
        a.swap32(ACC + 4 * j + 1, ACC + 4 * j + 3)
    for j in range(4):
        a.buf_store4(ACC + 4 * j, 8, OUT, "s68", j * 32)
    a.raw("L_oproj_end:")
    a.raw("    s_endpgm")
    return a


HEADER = """; Kernarg layout (104 bytes, ptrs only, base s[0:1]):
;   0 A_x  8 A_k_cache  16 A_v_cache  24 A_wq  32 A_wo  40 B_x  48 B_k_cache  56 B_v_cache  64 B_wq  72 B_wo
;   80 d_out  88 d_debug  96 d_ws
; Generated by gen/gen3.py (hand-written generator).  Three launches:
;   prep_kernel : re-layout wq/wo/x into MFMA fragment order in d_ws
;   attn_kernel : per (branch,b,head): Q = x@Wq_h, softmax(QK^T)V -> O (bf16, MFMA-fragment order) in d_ws
;   oproj_kernel: out = O @ Wo (128x64 tiles)
; @launch kernel=prep_kernel grid=(1024,1,1) block=(256,1,1) lds=16384
; @launch kernel=attn_kernel grid=(%d,1,1) block=(256,1,1) lds=81920
; @launch kernel=oproj_kernel grid=(256,1,1) block=(256,1,1) lds=%d
.amdgcn_target "amdgcn-amd-amdhsa--gfx950"
.text
.globl prep_kernel
.type prep_kernel,@function
.globl attn_kernel
.type attn_kernel,@function
.globl oproj_kernel
.type oproj_kernel,@function
""" % (1024 // NITEMS, 16384 * int(os.environ.get("K2_NSLOT", "6")))

KD = """.amdhsa_kernel {name}
  .amdhsa_next_free_vgpr {vgpr}
  .amdhsa_next_free_sgpr 102
  .amdhsa_accum_offset {acc}
  .amdhsa_group_segment_fixed_size 0
  .amdhsa_kernarg_size 104
  .amdhsa_user_sgpr_count 2
  .amdhsa_user_sgpr_kernarg_segment_ptr 1
  .amdhsa_system_sgpr_workgroup_id_x 1
.end_amdhsa_kernel
"""


def main():
    k0 = gen_k0()
    k1 = gen_k1()
    k2 = gen_k2()
    txt = HEADER + k0.text() + k1.text() + k2.text()
    txt += '.section .rodata,"a"\n.p2align 6\n'
    txt += KD.format(name="prep_kernel", vgpr=64, acc=64)
    txt += ".p2align 6\n"
    txt += KD.format(name="attn_kernel", vgpr=256, acc=256)
    txt += ".p2align 6\n"
    txt += KD.format(name="oproj_kernel", vgpr=256, acc=256)
    out = sys.argv[1] if len(sys.argv) > 1 else f"cdna_kernels/{NAME}.s"
    open(out, "w").write(txt)
    print("k1 inst", k1.n_inst, "nops", k1.n_nop, " k2 inst", k2.n_inst, "nops", k2.n_nop, file=sys.stderr)


main()
```

```python
import struct
import sys
import os

sys.path.insert(0, os.path.dirname(os.path.abspath(__file__)))
from asmgen import Asm, R, vr

NAME = "concat_heads__mha_block_cached__gqa_block_cached__near_ridge"


def f32hex(x):
    return "0x%08x" % struct.unpack("<I", struct.pack("<f", x))[0]


SCALE_LOG2E = (128 ** -0.5) * 1.4426950408889634
KV_FLAGS = os.environ.get("KV_FLAGS", " nt")
ST_FLAGS = os.environ.get("ST_FLAGS", " sc1")
K2LD_FLAGS = os.environ.get("K2LD_FLAGS", "")
XW_FLAGS = os.environ.get("XW_FLAGS", "")
NO_COMPUTE = os.environ.get("NO_COMPUTE", "") == "1"
NITEMS = int(os.environ.get("NITEMS", "1"))
WOOFF, WQOFF, XOFF, WSZ = 32 << 20, 40 << 20, 48 << 20, 52 << 20
WO_IN_K1 = os.environ.get("WO_IN_K1", "1") == "1"


class TileMgr:
    def __init__(self, a, nslots, order, issue_order, issue_fn, slot_bytes=16384):
        self.a = a
        self.free = list(range(nslots))
        self.order = order
        self.issue_order = list(issue_order)
        self.index = {k: i for i, k in enumerate(order)}
        self.slot = {}
        self.seq = {}
        self.issue_fn = issue_fn
        self.freed = set()
        self.slot_bytes = slot_bytes

    def issue_next(self):
        key = self.issue_order.pop(0)
        s = self.free.pop(0)
        self.slot[key] = s
        self.seq[key] = self.issue_fn(key, s)

    def fill(self):
        while self.free and self.issue_order:
            self.issue_next()

    def ready(self, key, mode):
        a = self.a
        t = self.index[key]
        assert key in self.slot, key
        if self.seq[key] >= 0:
            a.wait_vm_seq(self.seq[key])
        a.barrier()
        lim = t if mode == 'late' else t - 1
        for k in self.order[:max(lim, 0)]:
            if k not in self.freed:
                self.freed.add(k)
                self.free.append(self.slot[k])
        self.fill()

    def base(self, key):
        return self.slot[key] * self.slot_bytes


def run_pipeline(a, tm, items, fillers, ring_base, NR, D):
    n = len(items)
    nxt = 0
    for i in range(n):
        while nxt < n and nxt <= i + D:
            it = items[nxt]
            if it.get('first'):
                if it['mode'] == 'late' and nxt > i:
                    break
                tm.ready(it['tile'], it['mode'])
            if not NO_COMPUTE:
                it['reads'](ring_base + 4 * (nxt % NR))
            nxt += 1
        for f in fillers.get(i, []):
            if NO_COMPUTE and not getattr(f, 'mem', False):
                continue
            f()
        if not NO_COMPUTE:
            items[i]['mfma'](ring_base + 4 * (i % NR))


def spread(ops, start, count):
    res = {}
    per = (len(ops) + count - 1) // count
    for j, op in enumerate(ops):
        res.setdefault(start + j // per, []).append(op)
    return res


def merge(dst, src):
    for k, v in src.items():
        dst.setdefault(k, []).extend(v)


def make_srd(a, d, ptr, nbytes):
    a.salu(f"s_mov_b32 s{d}, s{ptr}")
    a.salu(f"s_and_b32 s{d + 1}, s{ptr + 1}, 0xffff")
    a.salu(f"s_mov_b32 s{d + 2}, {nbytes}")
    a.salu(f"s_mov_b32 s{d + 3}, 0x00020000")


def gen_k0():
    a = Asm()
    V = a.valu
    a.raw(".p2align 8")
    a.raw("prep_kernel:")
    a.salu("s_cmp_ge_u32 s2, 1024")
    a.salu("s_cbranch_scc1 L_prep_end")
    a.salu("s_load_dwordx16 s[16:31], s[0:1], 0")
    a.salu("s_load_dwordx4 s[32:35], s[0:1], 64")
    a.salu("s_load_dwordx2 s[36:37], s[0:1], 96")
    a.emit("v_lshrrev_b32 v1, 6, v0", 'valu', w=[1], r=[0])
    a.emit("v_and_b32 v0, 63, v0", 'valu', w=[0], r=[0])
    a.emit("v_readfirstlane_b32 s60, v1", 'rfl', r=[1], sw=[60])
    a.salu("s_waitcnt lgkmcnt(0)")
    make_srd(a, 56, 36, WSZ)
    OS = 56
    a.salu("s_lshl_b32 s65, s60, 12")
    V("v_lshlrev_b32", 2, "4", 0)
    a.salu("s_lshl_b32 s3, s2, 2")
    a.salu("s_add_u32 s3, s3, s60")
    a.salu("s_lshr_b32 s4, s3, 11")
    a.salu("s_cmp_eq_u32 s4, 0")
    a.salu("s_cselect_b64 s[10:11], s[16:17], s[26:27]")
    make_srd(a, 40, 10, 2 << 20)
    a.salu("s_lshr_b32 s5, s3, 5")
    a.salu("s_and_b32 s5, s5, 63")
    a.salu("s_lshl_b32 s5, s5, 15")
    a.salu("s_and_b32 s6, s3, 31")
    a.salu("s_lshl_b32 s6, s6, 5")
    a.salu("s_add_u32 s5, s5, s6")
    V("v_and_b32", 3, "31", 0)
    V("v_lshlrev_b32", 3, "10", 3)
    V("v_lshrrev_b32", 4, "5", 0)
    V("v_lshlrev_b32", 4, "4", 4)
    V("v_add_u32", 3, 3, 4)
    a.buf_load4(60, 3, 40, "s5", 0, os.environ.get("PREP_FLAGS"," nt"))
    a.salu("s_lshl_b32 s7, s3, 10")
    a.salu(f"s_add_u32 s7, s7, {XOFF}")
    V("v_lshrrev_b32", 16, "2", 0)
    V("v_and_b32", 16, "3", 16)
    V("v_lshrrev_b32", 17, "4", 0)
    V("v_and_b32", 17, "1", 17)
    V("v_lshlrev_b32", 17, "5", 17)
    V("v_and_b32", 18, "3", 0)
    V("v_lshlrev_b32", 18, "3", 18)
    V("v_add_u32", 17, 17, 18)
    V("v_lshrrev_b32", 19, "5", 0)
    a.salu("s_mov_b32 m0, s65", m0w=True)
    a.salu("s_cmp_ge_u32 s2, 512")
    a.salu("s_cbranch_scc1 L_prep_wo")
    st0 = (a.vm_seq, a.vm_done, a.lg_seq, a.lg_done, dict(a.pend))
    a.salu("s_lshr_b32 s4, s2, 8")
    a.salu("s_cmp_eq_u32 s4, 0")
    a.salu("s_cselect_b64 s[10:11], s[22:23], s[32:33]")
    make_srd(a, 44, 10, 4 << 20)
    a.salu("s_lshr_b32 s8, s2, 3")
    a.salu("s_and_b32 s8, s8, 31")
    a.salu("s_and_b32 s9, s2, 7")
    V("v_lshrrev_b32", 8, "4", 0)
    V("v_and_b32", 9, "15", 0)
    V("v_lshlrev_b32", 10, "2", 8)
    V("v_xor_b32", 10, 10, 9)
    V("v_lshlrev_b32", 10, "4", 10)
    V("v_lshlrev_b32", 6, "13", 8)
    V("v_add_u32", 6, 6, 10)
    a.salu("s_lshl_b32 s67, s60, 17")
    V("v_add_u32", 6, "s67", 6)
    a.salu("s_lshl_b32 s64, s9, 19")
    a.salu("s_lshl_b32 s61, s8, 8")
    a.salu("s_add_u32 s64, s64, s61")
    for i in range(4):
        a.salu(f"s_add_u32 s62, s64, {4 * i * 8192 - 1024 * i}")
        a.dma4(6, 44, "s62", 1024 * i, os.environ.get("PREP_FLAGS"," nt"))
    V("v_lshlrev_b32", 20, "11", 19)
    V("v_mul_u32_u24", 21, "0x140", 16)
    V("v_add_u32", 20, 20, 21)
    V("v_add_u32", 20, 20, 17)
    V("v_add_u32", 24, "s65", 20)
    for dt in range(1, 4):
        V("v_xor_b32", 24 + dt, str(64 * dt), 24)
    a.salu("s_lshl_b32 s66, s4, 5")
    a.salu("s_add_u32 s66, s66, s8")
    a.salu("s_lshl_b32 s66, s66, 5")
    a.salu("s_lshl_b32 s61, s9, 2")
    a.salu("s_add_u32 s66, s66, s61")
    a.salu("s_add_u32 s66, s66, s60")
    a.salu("s_lshl_b32 s66, s66, 12")
    a.salu(f"s_add_u32 s66, s66, {WQOFF}")
    a.wait_all_vm()
    a.barrier()
    for dt in range(4):
        a.ds_read_tr(32 + 4 * dt, 24 + dt, 0)
        a.ds_read_tr(34 + 4 * dt, 24 + dt, 1024)
    for dt in range(4):
        a.buf_store4(32 + 4 * dt, 2, OS, "s66", 1024 * dt)
    a.buf_store4(60, 2, OS, "s7", 0)
    a.raw("    s_endpgm")
    a.raw("L_prep_wo:")
    a.vm_seq, a.vm_done, a.lg_seq, a.lg_done, a.pend = st0
    a.hist = []
    if WO_IN_K1:
        a.buf_store4(60, 2, OS, "s7", 0)
        a.raw("L_prep_end:")
        a.raw("    s_endpgm")
        return a
    a.salu("s_sub_u32 s3, s2, 512")
    a.salu("s_lshr_b32 s4, s3, 8")
    a.salu("s_cmp_eq_u32 s4, 0")
    a.salu("s_cselect_b64 s[10:11], s[24:25], s[34:35]")
    make_srd(a, 44, 10, 4 << 20)
    a.salu("s_lshr_b32 s8, s3, 5")
    a.salu("s_and_b32 s8, s8, 7")
    a.salu("s_and_b32 s9, s3, 31")
    V("v_lshrrev_b32", 8, "3", 0)
    V("v_lshlrev_b32", 8, "10", 8)
    V("v_and_b32", 9, "7", 0)
    V("v_lshrrev_b32", 10, "4", 0)
    V("v_and_b32", 10, "1", 10)
    V("v_lshlrev_b32", 10, "2", 10)
    V("v_xor_b32", 9, 9, 10)
    V("v_lshlrev_b32", 9, "4", 9)
    V("v_add_u32", 6, 8, 9)
    a.salu("s_lshl_b32 s67, s60, 15")
    V("v_add_u32", 6, "s67", 6)
    a.salu("s_lshl_b32 s64, s9, 17")
    a.salu("s_lshl_b32 s61, s8, 7")
    a.salu("s_add_u32 s64, s64, s61")
    for i in range(4):
        a.salu(f"s_add_u32 s62, s64, {8192 * i - 1024 * i}")
        a.dma4(6, 44, "s62", 1024 * i, os.environ.get("PREP_FLAGS"," nt"))
    V("v_lshlrev_b32", 20, "10", 19)
    V("v_lshlrev_b32", 21, "7", 16)
    V("v_add_u32", 20, 20, 21)
    V("v_lshrrev_b32", 21, "1", 16)
    V("v_lshlrev_b32", 21, "6", 21)
    V("v_add_u32", 20, 20, 21)
    V("v_add_u32", 20, 20, 17)
    V("v_add_u32", 24, "s65", 20)
    V("v_xor_b32", 25, "64", 24)
    a.salu("s_lshl_b32 s66, s4, 22")
    a.salu("s_lshl_b32 s61, s8, 19")
    a.salu("s_add_u32 s66, s66, s61")
    a.salu("s_lshl_b32 s61, s9, 14")
    a.salu("s_add_u32 s66, s66, s61")
    a.salu("s_add_u32 s66, s66, s65")
    a.salu(f"s_add_u32 s66, s66, {WOOFF}")
    a.wait_all_vm()
    a.barrier()
    for q in range(2):
        for nt in range(2):
            a.ds_read_tr(32 + 8 * q + 4 * nt, 24 + nt, q * 2048)
            a.ds_read_tr(34 + 8 * q + 4 * nt, 24 + nt, q * 2048 + 512)
    for q in range(2):
        for nt in range(2):
            a.buf_store4(32 + 8 * q + 4 * nt, 2, OS, "s66", (2 * q + nt) * 1024)
    a.buf_store4(60, 2, OS, "s7", 0)
    a.raw("L_prep_end:")
    a.raw("    s_endpgm")
    return a


def gen_k1():
    nwg = 1024 // NITEMS
    a = Asm()
    a.raw(".p2align 8")
    a.raw("attn_kernel:")
    a.salu(f"s_cmp_ge_u32 s2, {nwg}")
    a.salu("s_cbranch_scc1 L_attn_end")
    a.salu("s_load_dwordx16 s[16:31], s[0:1], 0")
    a.salu("s_load_dwordx4 s[32:35], s[0:1], 64")
    a.salu("s_load_dwordx2 s[36:37], s[0:1], 96")
    a.salu("s_and_b32 s3, s2, 7")
    a.salu("s_lshr_b32 s4, s2, 3")
    a.salu("s_lshr_b32 s5, s3, 2")
    if os.environ.get("MAPB", "") == "1":
        assert NITEMS == 1
        a.salu("s_and_b32 s6, s3, 3")
        a.salu("s_lshr_b32 s7, s4, 5")
        a.salu("s_and_b32 s8, s4, 31")
        a.salu("s_lshl_b32 s6, s6, 2")
        a.salu("s_add_u32 s7, s7, s6")
    else:
        a.salu("s_and_b32 s6, s3, 3")
        a.salu("s_lshr_b32 s7, s4, 3")
        a.salu("s_and_b32 s8, s4, 7")
        a.salu("s_lshl_b32 s6, s6, 3")
        a.salu("s_add_u32 s8, s8, s6")
    a.emit("v_lshrrev_b32 v1, 6, v0", 'valu', w=[1], r=[0])
    a.emit("v_and_b32 v0, 63, v0", 'valu', w=[0], r=[0])
    a.emit("v_readfirstlane_b32 s60, v1", 'rfl', r=[1], sw=[60])
    a.salu("s_waitcnt lgkmcnt(0)")
    a.salu("s_cmp_eq_u32 s5, 0")
    a.salu("s_cselect_b64 s[10:11], s[16:17], s[26:27]")
    a.salu("s_cselect_b64 s[12:13], s[18:19], s[28:29]")
    a.salu("s_cselect_b64 s[14:15], s[20:21], s[30:31]")
    a.salu("s_cselect_b64 s[38:39], s[22:23], s[32:33]")
    make_srd(a, 40, 10, 2 << 20)
    make_srd(a, 44, 12, 64 << 20)
    make_srd(a, 48, 14, 64 << 20)
    make_srd(a, 52, 38, 4 << 20)
    make_srd(a, 56, 36, WSZ)
    XS, KS, VS, WS, OS = 40, 44, 48, 52, 56
    RSH = {1: 9, 2: 8}[NITEMS]
    a.salu(f"s_lshr_b32 s72, s2, {RSH}")
    a.salu("s_cmp_eq_u32 s72, 0")
    a.salu("s_cselect_b64 s[74:75], s[24:25], s[34:35]")
    make_srd(a, 76, 74, 4 << 20)
    WOS = 76
    BSTEP = 16 // NITEMS
    a.salu("s_lshl_b32 s61, s7, 5")
    a.salu("s_add_u32 s61, s61, s8")
    a.salu("s_lshl_b32 s61, s61, 17")
    a.salu("s_lshl_b32 s64, s8, 8")
    a.salu("s_lshl_b32 s65, s60, 12")
    a.salu(f"s_mov_b32 s63, {f32hex(SCALE_LOG2E)}")
    a.salu(f"s_mov_b32 s66, {f32hex(-SCALE_LOG2E)}")
    V = a.valu
    V("v_lshrrev_b32", 8, "4", 0)
    V("v_and_b32", 9, "15", 0)
    V("v_lshlrev_b32", 10, "2", 8)
    V("v_xor_b32", 10, 10, 9)
    V("v_lshlrev_b32", 10, "4", 10)
    V("v_lshlrev_b32", 11, "8", 8)
    V("v_add_u32", 1, 10, 11)
    V("v_add_u32", 1, "s65", 1)
    V("v_lshlrev_b32", 6, "4", 0)
    V("v_add_u32", 6, "s65", 6)
    a.salu("s_lshl_b32 s64, s5, 5")
    a.salu("s_add_u32 s64, s64, s8")
    a.salu("s_lshl_b32 s64, s64, 17")
    a.salu(f"s_add_u32 s64, s64, {WQOFF}")
    V("v_xor_b32", 12, 9, 8)
    V("v_lshlrev_b32", 12, "4", 12)
    V("v_add_u32", 12, 12, 11)
    V("v_add_u32", 2, "s65", 12)
    a.salu("s_lshl_b32 s73, s5, 4")
    a.salu("s_add_u32 s73, s73, s7")
    a.salu("s_lshl_b32 s73, s73, 2")
    a.salu("s_add_u32 s73, s73, s60")
    a.salu("s_lshl_b32 s73, s73, 15")
    a.salu(f"s_add_u32 s73, s73, {XOFF}")
    V("v_lshlrev_b32", 7, "4", 0)

    def issue(key, slot):
        kind, it, idx = key
        a.salu(f"s_add_u32 m0, s65, {slot * 16384}", m0w=True)
        last = None
        if kind == 'W':
            a.salu(f"s_add_u32 s62, s64, {idx * 16384}")
            for i in range(4):
                last = a.dma4(6, OS, "s62", 1024 * i, XW_FLAGS)
        else:
            a.salu(f"s_add_u32 s62, s61, {idx * 16384 + it * BSTEP * 32 * 131072}")
            for i in range(4):
                if kind == 'K':
                    if i == 0:
                        last = a.dma4(2, KS, "s62", 0, KV_FLAGS)
                    else:
                        V("v_xor_b32", 3, str(64 * i), 2)
                        last = a.dma4(3, KS, "s62", 1024 * i, KV_FLAGS)
                else:
                    last = a.dma4(1, VS, "s62", 1024 * i, KV_FLAGS)
        return last

    order, iorder = [], []
    for it in range(NITEMS):
        order += [('W', it, i) for i in range(8)] + [('K', it, i) for i in range(8)] + [('V', it, i) for i in range(8)]
        NW0 = int(os.environ.get("NW0", "3"))
        iorder += [('W', it, i) for i in range(NW0)] + [('K', it, i) for i in range(5 - NW0)]
        iorder += [('W', it, i) for i in range(NW0, 8)] + [('K', it, i) for i in range(5 - NW0, 8)] + [('V', it, i) for i in range(8)]
    tm = TileMgr(a, 5, order, iorder, issue)
    XF = 128

    def xload(it, ks):
        if ks % 4 == 0 or it > 0:
            a.salu(f"s_add_u32 s71, s73, {it * BSTEP * 4 * 32768 + (ks // 4) * 4096}")
        a.buf_load4(XF + 4 * ks, 7, OS, "s71", (ks % 4) * 1024, XW_FLAGS)

    tm.issue_next()
    for ks in range(32):
        xload(0, ks)
    tm.fill()

    def tr_addrs(hmul):
        V("v_lshrrev_b32", 16, "2", 0)
        V("v_and_b32", 16, "3", 16)
        V("v_lshrrev_b32", 17, "4", 0)
        V("v_and_b32", 17, "1", 17)
        V("v_and_b32", 18, "3", 0)
        V("v_lshrrev_b32", 19, "5", 0)
        V("v_lshlrev_b32", 19, str(8 + {4: 2, 8: 3}[hmul]), 19)
        V("v_mul_u32_u24", 20, "0x140", 16)
        V("v_add_u32", 19, 19, 20)
        V("v_lshlrev_b32", 17, "5", 17)
        V("v_add_u32", 19, 19, 17)
        V("v_lshlrev_b32", 18, "3", 18)
        V("v_add_u32", 24, 19, 18)
        for dt in range(1, 4):
            V("v_xor_b32", 24 + dt, str(64 * dt), 24)
        for dt in range(4):
            V("v_add_u32", 28 + dt, "0x8000", 24 + dt)

    def tr_read(d, dt, off):
        if off >= 32768:
            a.ds_read_tr(d, 28 + dt, off - 32768)
        else:
            a.ds_read_tr(d, 24 + dt, off)

    RING, NR, D = 32, 8, 6
    QA = 64
    QF = QA
    SA = 96
    SP = 128
    OA = 64
    T = 8
    PB = 16
    MX0, MX1 = 4, 5
    NEGMC, LS = 4, 5

    for it in range(NITEMS):
        V("v_lshlrev_b32", 24, "4", 0)
        V("v_add_u32", 28, "0x8000", 24)
        items = []
        for ks in range(32):
            j, kq = ks // 4, ks % 4
            for dt in range(4):
                def reads(reg, j=j, kq=kq, dt=dt):
                    off = tm.base(('W', it, j)) + (4 * kq + dt) * 1024
                    if off >= 32768:
                        a.ds_read_b128(reg, 28, off - 32768)
                    else:
                        a.ds_read_b128(reg, 24, off)

                def mf(reg, ks=ks, dt=dt):
                    a.mfma32(QA + 16 * dt, reg, XF + 4 * ks, None if ks == 0 else QA + 16 * dt)
                items.append(dict(tile=('W', it, j), first=(kq == 0 and dt == 0), mode='late', reads=reads, mfma=mf))
        run_pipeline(a, tm, items, {}, RING, NR, D)

        V("v_and_b32", 16, "31", 0)
        V("v_lshlrev_b32", 16, "8", 16)
        V("v_and_b32", 17, "15", 0)
        V("v_lshrrev_b32", 18, "5", 0)
        V("v_xor_b32", 17, 17, 18)
        V("v_lshlrev_b32", 17, "4", 17)
        V("v_add_u32", 8, 16, 17)
        for kk in range(1, 8):
            V("v_xor_b32", 8 + kk, str(32 * kk), 8)
        for kk in range(8):
            V("v_add_u32", 16 + kk, "0x8000", 8 + kk)
        V("v_mov_b32", MX0, "0xff800000")
        V("v_mov_b32", MX1, "0xff800000")
        for kk in range(8):
            for i in range(4):
                a.cvt_pk(QF + 4 * kk + i, QA + 8 * kk + 2 * i, QA + 8 * kk + 2 * i + 1)
        for kk in range(8):
            a.swap32(QF + 4 * kk + 0, QF + 4 * kk + 2)
            a.swap32(QF + 4 * kk + 1, QF + 4 * kk + 3)

        items = []
        fillers = {}

        def post_sub(u):
            ops = []
            sa = SA + 16 * (u % 2)
            for i in range(8):
                mx = MX0 + (i % 2)
                ops.append(lambda i=i, mx=mx: a.emit(
                    f"v_max3_f32 v{mx}, v{sa + 2 * i}, v{sa + 2 * i + 1}, v{mx}", 'valu',
                    w=[mx], r=[sa + 2 * i, sa + 2 * i + 1, mx]))
                ops.append(lambda i=i: a.cvt_pk(SP + 8 * u + i, sa + 2 * i, sa + 2 * i + 1))
            return ops

        for u in range(16):
            j, st = u // 2, u % 2
            for kk in range(8):
                def reads(reg, j=j, st=st, kk=kk):
                    off = tm.base(('K', it, j)) + st * 8192
                    if off >= 32768:
                        a.ds_read_b128(reg, 16 + kk, off - 32768)
                    else:
                        a.ds_read_b128(reg, 8 + kk, off)

                def mf(reg, u=u, kk=kk):
                    sa = SA + 16 * (u % 2)
                    a.mfma32(sa, reg, QF + 4 * kk, None if kk == 0 else sa)
                items.append(dict(tile=('K', it, j), first=(st == 0 and kk == 0),
                                  mode=('late' if j == 0 else 'early'), reads=reads, mfma=mf))
            if u >= 1:
                merge(fillers, spread(post_sub(u - 1), 8 * u + 2, 6))
        run_pipeline(a, tm, items, fillers, RING, NR, D)
        for f in post_sub(15):
            f()
        V("v_max_f32", MX0, MX0, MX1)
        V("v_mov_b32", MX1, MX0)
        a.swap32(MX0, MX1)
        V("v_max_f32", MX0, MX0, MX1)
        a.cvt_pk(MX1, MX0, MX0)
        V("v_lshlrev_b32", MX1, "16", MX1)
        V("v_mul_f32", NEGMC, "s66", MX1)
        V("v_mov_b32", LS, "0")
        tr_addrs(4)

        def p_ops(s):
            ops = []
            sp = SP + 4 * s
            pb = PB + 4 * (s % 2)
            for i in range(4):
                ops.append(lambda i=i: V("v_lshlrev_b32", T + 2 * i, "16", sp + i))
                ops.append(lambda i=i: V("v_and_b32", T + 2 * i + 1, "0xffff0000", sp + i))
            for i in range(8):
                ops.append(lambda i=i: V("v_fma_f32", T + i, T + i, "s63", NEGMC))
            for i in range(8):
                ops.append(lambda i=i: V("v_exp_f32", T + i, T + i, kind='trans'))
            for i in range(4):
                ops.append(lambda i=i: V("v_add_f32", LS, LS, T + 2 * i))
                ops.append(lambda i=i: a.cvt_pk(pb + i, T + 2 * i, T + 2 * i + 1))
                ops.append(lambda i=i: V("v_add_f32", LS, LS, T + 2 * i + 1))
            return ops

        for f in p_ops(0):
            f()
        items = []
        fillers = {}
        for s in range(32):
            j, m = s // 4, s % 4
            for dt in range(4):
                def reads(reg, j=j, m=m, dt=dt):
                    base = tm.base(('V', it, j)) + (16 * m) * 256
                    tr_read(reg, dt, base)
                    tr_read(reg + 2, dt, base + 8 * 256)

                def mf(reg, s=s, dt=dt):
                    a.mfma32(OA + 16 * dt, reg, PB + 4 * (s % 2), None if s == 0 else OA + 16 * dt)
                items.append(dict(tile=('V', it, j), first=(m == 0 and dt == 0),
                                  mode=('late' if j == 0 else 'early'), reads=reads, mfma=mf))
            if s < 31:
                merge(fillers, spread(p_ops(s + 1), 4 * s, 4))
            if it + 1 < NITEMS:
                def xl(s=s):
                    xload(it + 1, s)
                xl.mem = True
                fillers.setdefault(4 * s + 3, []).append(xl)
        run_pipeline(a, tm, items, fillers, RING, NR, D)

        RL = 16
        nfr = 2 if WO_IN_K1 else 0
        if WO_IN_K1:
            a.salu(f"s_and_b32 s80, s2, {(1 << RSH) - 1}")
            if NITEMS > 1:
                a.salu(f"s_lshl_b32 s80, s80, {NITEMS - 1}")
                a.salu(f"s_add_u32 s80, s80, {it}")
            a.salu("s_lshl_b32 s81, s80, 2")
            a.salu("s_add_u32 s81, s81, s60")
            a.salu("s_and_b32 s82, s81, 255")
            a.salu("s_lshr_b32 s83, s80, 6")
            a.salu("s_lshl_b32 s82, s82, 14")
            a.salu("s_lshl_b32 s83, s83, 7")
            a.salu("s_add_u32 s82, s82, s83")
            a.salu("s_add_u32 s83, s82, 4096")
            V("v_lshrrev_b32", 9, "5", 0)
            V("v_lshlrev_b32", 9, "13", 9)
            V("v_and_b32", 10, "31", 0)
            V("v_lshlrev_b32", 10, "1", 10)
            V("v_add_u32", 9, 9, 10)
        for i in range(nfr):
            for e in range(8):
                reg = 32 + 8 * i + e
                so = "s82" if e < 4 else "s83"
                a.emit(f"buffer_load_ushort v{reg}, v9, s[{WOS}:{WOS + 3}], {so} offen offset:{(e % 4) * 1024 + 64 * i}",
                       'vmem_ld', w=[reg], r=[9])
        V("v_mov_b32", 8, LS)
        a.swap32(LS, 8)
        V("v_add_f32", LS, LS, 8)
        V("v_rcp_f32", LS, LS, kind='trans')
        a.salu("s_lshl_b32 s68, s5, 24")
        a.salu("s_lshl_b32 s69, s7, 20")
        a.salu("s_add_u32 s68, s68, s69")
        a.salu("s_lshl_b32 s69, s60, 18")
        a.salu("s_add_u32 s68, s68, s69")
        a.salu("s_lshl_b32 s69, s8, 13")
        a.salu("s_add_u32 s68, s68, s69")
        if it:
            a.salu(f"s_add_u32 s68, s68, {it * BSTEP << 20}")
        V("v_lshlrev_b32", 8, "4", 0)
        for j in range(8):
            for i in range(8):
                V("v_mul_f32", OA + 8 * j + i, OA + 8 * j + i, LS)
            for i in range(4):
                a.cvt_pk(OA + 4 * j + i, OA + 8 * j + 2 * i, OA + 8 * j + 2 * i + 1)
        for j in range(8):
            a.swap32(OA + 4 * j + 0, OA + 4 * j + 2)
            a.swap32(OA + 4 * j + 1, OA + 4 * j + 3)
        for j in range(8):
            if j == 4:
                a.salu("s_add_u32 s68, s68, 4096")
            a.buf_store4(OA + 4 * j, 8, OS, "s68", (j % 4) * 1024, ST_FLAGS)
        if WO_IN_K1:
            a.salu("s_lshl_b32 s84, s72, 22")
            a.salu("s_lshl_b32 s85, s81, 11")
            a.salu("s_add_u32 s84, s84, s85")
            a.salu(f"s_add_u32 s84, s84, {WOOFF}")
        for i in range(nfr):
            for e in range(4):
                V("v_lshl_or_b32", RL + 4 * i + e, 32 + 8 * i + 2 * e + 1, "16", 32 + 8 * i + 2 * e)
        for i in range(nfr):
            a.buf_store4(RL + 4 * i, 8, OS, "s84", 1024 * i, ST_FLAGS)
    a.raw("L_attn_end:")
    a.raw("    s_endpgm")
    return a


def gen_k2():
    a = Asm()
    a.raw(".p2align 8")
    a.raw("oproj_kernel:")
    a.salu("s_cmp_ge_u32 s2, 256")
    a.salu("s_cbranch_scc1 L_oproj_end")
    a.salu("s_load_dwordx2 s[20:21], s[0:1], 80")
    a.salu("s_load_dwordx2 s[22:23], s[0:1], 96")
    a.salu("s_and_b32 s3, s2, 7")
    a.salu("s_lshr_b32 s4, s2, 3")
    a.salu("s_lshr_b32 s5, s3, 2")
    a.salu("s_and_b32 s6, s3, 3")
    a.salu("s_lshl_b32 s6, s6, 2")
    a.salu("s_lshr_b32 s7, s4, 3")
    a.salu("s_add_u32 s6, s6, s7")
    a.salu("s_and_b32 s7, s4, 7")
    a.emit("v_lshrrev_b32 v1, 6, v0", 'valu', w=[1], r=[0])
    a.emit("v_and_b32 v0, 63, v0", 'valu', w=[0], r=[0])
    a.emit("v_readfirstlane_b32 s60, v1", 'rfl', r=[1], sw=[60])
    a.salu("s_waitcnt lgkmcnt(0)")
    make_srd(a, 44, 22, WSZ)
    make_srd(a, 48, 20, 4 << 20)
    OS, OUT = 44, 48
    V = a.valu
    a.salu("s_lshl_b32 s65, s60, 12")
    a.salu("s_lshl_b32 s64, s7, 7")
    a.salu("s_lshl_b32 s71, s5, 22")
    a.salu("s_lshl_b32 s69, s7, 19")
    a.salu("s_add_u32 s71, s71, s69")
    a.salu(f"s_add_u32 s71, s71, {32 << 20}")
    V("v_lshlrev_b32", 2, "4", 0)
    V("v_add_u32", 1, "s65", 2)
    V("v_add_u32", 3, "0xc000", 2)
    V("v_add_u32", 4, "0x18000", 2)
    a.salu("s_lshl_b32 s68, s5, 24")
    a.salu("s_lshl_b32 s69, s6, 20")
    a.salu("s_add_u32 s68, s68, s69")
    a.salu("s_lshl_b32 s69, s60, 18")
    a.salu("s_add_u32 s68, s68, s69")

    NSLOT = int(os.environ.get("K2_NSLOT", "6"))

    def issue(key, slot):
        idx = key[1]
        a.salu(f"s_add_u32 m0, s65, {slot * 16384}", m0w=True)
        a.salu(f"s_add_u32 s62, s71, {idx * 16384}")
        last = None
        for i in range(4):
            last = a.dma4(1, OS, "s62", 1024 * i, K2LD_FLAGS)
        return last

    order = [('W', i) for i in range(32)]
    tm = TileMgr(a, NSLOT, order, order, issue)
    OF, NOF, OD = 96, int(os.environ.get("K2_NOF", "24")), int(os.environ.get("K2_OD", "20"))
    ACC = 64
    ld_state = dict(n=0)

    def load_frag():
        n = ld_state['n']
        if n >= 256:
            return
        if n % 4 == 0 and n > 0:
            a.salu("s_add_u32 s68, s68, 4096")
        a.buf_load4(OF + 4 * (n % NOF), 2, OS, "s68", (n % 4) * 1024, K2LD_FLAGS)
        ld_state['n'] = n + 1
        if NO_COMPUTE:
            a.pend.clear()
            if a.vm_seq - a.vm_done > 40:
                a.wait_vm_seq(a.vm_seq - 40)
    load_frag.mem = True

    tm.issue_next()
    for _ in range(8):
        load_frag()
    tm.fill()
    for _ in range(OD - 8):
        load_frag()

    RING, NR, D = 32, 8, 6
    items = []
    fillers = {}
    for s in range(256):
        j, q = s // 8, s % 8
        for nt in range(2):
            def reads(reg, j=j, q=q, nt=nt):
                off = tm.base(('W', j)) + (2 * q + nt) * 1024
                if off >= 98304:
                    a.ds_read_b128(reg, 4, off - 98304)
                elif off >= 49152:
                    a.ds_read_b128(reg, 3, off - 49152)
                else:
                    a.ds_read_b128(reg, 2, off)

            def mf(reg, s=s, nt=nt):
                a.mfma32(ACC + 16 * nt, reg, OF + 4 * (s % NOF), None if s == 0 else ACC + 16 * nt)
            items.append(dict(tile=('W', j), first=(q == 0 and nt == 0), mode=('late' if j == 0 else 'early'),
                              reads=reads, mfma=mf))
        fillers.setdefault(2 * s + 1, []).append(load_frag)
    run_pipeline(a, tm, items, fillers, RING, NR, D)

    a.salu("s_lshl_b32 s68, s6, 18")
    a.salu("s_lshl_b32 s69, s60, 16")
    a.salu("s_add_u32 s68, s68, s69")
    a.salu("s_lshl_b32 s69, s5, 10")
    a.salu("s_add_u32 s68, s68, s69")
    a.salu("s_add_u32 s68, s68, s64")
    V("v_and_b32", 8, "31", 0)
    V("v_lshlrev_b32", 8, "11", 8)
    V("v_lshrrev_b32", 9, "5", 0)
    V("v_lshlrev_b32", 9, "4", 9)
    V("v_add_u32", 8, 8, 9)
    for j in range(4):
        for i in range(4):
            a.cvt_pk(ACC + 4 * j + i, ACC + 8 * j + 2 * i, ACC + 8 * j + 2 * i + 1)
    for j in range(4):
        a.swap32(ACC + 4 * j + 0, ACC + 4 * j + 2)
        a.swap32(ACC + 4 * j + 1, ACC + 4 * j + 3)
    for j in range(4):
        a.buf_store4(ACC + 4 * j, 8, OUT, "s68", j * 32)
    a.raw("L_oproj_end:")
    a.raw("    s_endpgm")
    return a


HEADER = """; Kernarg layout (104 bytes, ptrs only, base s[0:1]):
;   0 A_x  8 A_k_cache  16 A_v_cache  24 A_wq  32 A_wo  40 B_x  48 B_k_cache  56 B_v_cache  64 B_wq  72 B_wo
;   80 d_out  88 d_debug  96 d_ws
; Generated by gen/gen3.py (hand-written generator).  Three launches:
;   prep_kernel : re-layout wq/wo/x into MFMA fragment order in d_ws
;   attn_kernel : per (branch,b,head): Q = x@Wq_h, softmax(QK^T)V -> O (bf16, MFMA-fragment order) in d_ws
;   oproj_kernel: out = O @ Wo (128x64 tiles)
; @launch kernel=prep_kernel grid=(1024,1,1) block=(256,1,1) lds=16384
; @launch kernel=attn_kernel grid=(%d,1,1) block=(256,1,1) lds=81920
; @launch kernel=oproj_kernel grid=(256,1,1) block=(256,1,1) lds=%d
.amdgcn_target "amdgcn-amd-amdhsa--gfx950"
.text
.globl prep_kernel
.type prep_kernel,@function
.globl attn_kernel
.type attn_kernel,@function
.globl oproj_kernel
.type oproj_kernel,@function
""" % (1024 // NITEMS, 16384 * int(os.environ.get("K2_NSLOT", "6")))

KD = """.amdhsa_kernel {name}
  .amdhsa_next_free_vgpr {vgpr}
  .amdhsa_next_free_sgpr 102
  .amdhsa_accum_offset {acc}
  .amdhsa_group_segment_fixed_size 0
  .amdhsa_kernarg_size 104
  .amdhsa_user_sgpr_count 2
  .amdhsa_user_sgpr_kernarg_segment_ptr 1
  .amdhsa_system_sgpr_workgroup_id_x 1
.end_amdhsa_kernel
"""


def main():
    k0 = gen_k0()
    k1 = gen_k1()
    k2 = gen_k2()
    txt = HEADER + k0.text() + k1.text() + k2.text()
    txt += '.section .rodata,"a"\n.p2align 6\n'
    txt += KD.format(name="prep_kernel", vgpr=64, acc=64)
    txt += ".p2align 6\n"
    txt += KD.format(name="attn_kernel", vgpr=256, acc=256)
    txt += ".p2align 6\n"
    txt += KD.format(name="oproj_kernel", vgpr=256, acc=256)
    out = sys.argv[1] if len(sys.argv) > 1 else f"cdna_kernels/{NAME}.s"
    open(out, "w").write(txt)
    print("k1 inst", k1.n_inst, "nops", k1.n_nop, " k2 inst", k2.n_inst, "nops", k2.n_nop, file=sys.stderr)


main()
```
